```python
import torch

def _softmax(x, axis=-1):
    return torch.softmax(x, dim=axis)
def _gelu(x):
    return torch.nn.functional.gelu(x, approximate="tanh")
def _silu(x):
    return torch.nn.functional.silu(x)
def _sigmoid(x):
    return torch.sigmoid(x)
def _layernorm(x, axis=-1, eps=1e-5):
    m = x.mean(dim=axis, keepdim=True)
    v = x.var(dim=axis, keepdim=True, unbiased=False)
    return (x - m) / torch.sqrt(v + eps)
def _scatter_add(tgt, idx, src, axis=0):
    return tgt.clone().index_add_(axis, idx, src)
def _segment_sum(src, seg, n):
    out = torch.zeros((n,) + src.shape[1:], dtype=src.dtype)
    return out.index_add_(0, seg, src)
def _pad(x, pw):
    flat = tuple(v for pair in reversed(pw) for v in pair)
    return torch.nn.functional.pad(x, flat)

kernel_name = 'concat_heads__mha_block__linear_kernel_hedgehog__prompt'

def setup_inputs():

    _w = (lambda a: (lambda t: t.to(torch.bfloat16) if t.is_floating_point() else t)(torch.as_tensor(a)))
    def _A_setup():
        B, S, D, H = 1, 2048, 640, 32
        return {
            "x": _w((lambda *s: torch.randn(*s, dtype=torch.bfloat16) * 0.2)(B, S, D)),
            "wqkv": _w((lambda *s: torch.randn(*s, dtype=torch.bfloat16) * 0.2)(D, 3 * D)),
            "wo": _w((lambda *s: torch.randn(*s, dtype=torch.bfloat16) * 0.05)(D, D)),
        }
    _A_in = _A_setup()

    def _B_setup():
        B, S, D, H = 1, 2048, 640, 32
        Dh = D // H
        return {
            "x": _w((lambda *s: torch.randn(*s, dtype=torch.bfloat16) * 0.4)(B, S, D)),
            "wqkv": _w((lambda *s: torch.randn(*s, dtype=torch.bfloat16) * 0.4)(D, 3 * D)),
            "w_phi": _w((lambda *s: torch.randn(*s, dtype=torch.bfloat16) * 0.4)(H, Dh, Dh) * (Dh ** -0.5)),
            "wo": _w((lambda *s: torch.randn(*s, dtype=torch.bfloat16) * 0.05)(D, D)),
        }
    _B_in = _B_setup()

    return {
        "A_x": _A_in["x"],
        "A_wqkv": _A_in["wqkv"],
        "A_wo": _A_in["wo"],
        "B_x": _B_in["x"],
        "B_wqkv": _B_in["wqkv"],
        "B_w_phi": _B_in["w_phi"],
        "B_wo": _B_in["wo"],
    }

def reference(A_x, A_wqkv, A_wo, B_x, B_wqkv, B_w_phi, B_wo):
    def _A_ref(x, wqkv, wo):
        B, S, D = x.shape
        H = 32
        Dh = D // H
        qkv = (lambda x, *d: x.permute(*d))((x @ wqkv).reshape(B, S, 3, H, Dh), 2, 0, 3, 1, 4)
        q, k, v = qkv[0], qkv[1], qkv[2]
        scores = torch.einsum("bhqd,bhkd->bhqk", q, k) * (Dh ** -0.5)
        p = _softmax(scores, axis=-1)
        o = torch.einsum("bhqk,bhkd->bhqd", p, v)
        return (lambda x, *d: x.permute(*d))(o, 0, 2, 1, 3).reshape(B, S, D) @ wo

    def _B_ref(x, wqkv, w_phi, wo):
        B, S, D = x.shape
        H = 32; Dh = D // H
        qkv = (lambda x, *d: x.permute(*d))((x @ wqkv).reshape(B, S, 3, H, Dh), 2, 0, 3, 1, 4)
        q, k, v = qkv[0], qkv[1], qkv[2]
        pq = torch.einsum("bhsd,hdf->bhsf", q, w_phi)
        pk = torch.einsum("bhsd,hdf->bhsf", k, w_phi)
        phi_q = torch.concatenate([_softmax(pq, axis=-1), _softmax(-pq, axis=-1)], axis=-1)
        phi_k = torch.concatenate([_softmax(pk, axis=-1), _softmax(-pk, axis=-1)], axis=-1)
        kv = torch.einsum("bhsf,bhsd->bhfd", phi_k, v)
        z  = torch.einsum("bhsf->bhf", phi_k)
        num = torch.einsum("bhqf,bhfd->bhqd", phi_q, kv)
        den = torch.einsum("bhqf,bhf->bhq", phi_q, z)[..., None] + 1e-6
        o = num / den
        return (lambda x, *d: x.permute(*d))(o, 0, 2, 1, 3).reshape(B, S, D) @ wo

    a = _A_ref(A_x, A_wqkv, A_wo)
    b = _B_ref(B_x, B_wqkv, B_w_phi, B_wo)
    return torch.concatenate([a, b], axis=-1)
```

```python
import re
TRANS = ("v_exp_", "v_log_", "v_rcp_", "v_rsq_", "v_sqrt_", "v_sin_", "v_cos_")
def regs(tok):
    tok = tok.strip().lstrip("-").replace("abs(", "").replace(")", "").replace("|", "")
    m = re.fullmatch(r"([vsa])\[(\d+):(\d+)\]", tok)
    if m: return [(m.group(1), i) for i in range(int(m.group(2)), int(m.group(3)) + 1)]
    m = re.fullmatch(r"([vsa])(\d+)", tok)
    if m: return [(m.group(1), int(m.group(2)))]
    if tok == "vcc": return [("s", "vcc")]
    if tok == "m0": return [("s", "m0")]
    if tok == "exec": return [("s", "exec")]
    return []
class I:
    def __init__(s, text):
        s.text = text; t = text.split(";")[0].strip()
        s.label = t.endswith(":") or t.startswith(".") or t == ""
        p = t.split(None, 1); s.op = p[0] if p else ""
        ops = [o.strip() for o in p[1].split(",")] if len(p) > 1 else []
        ops = [o.split()[0] if o else o for o in ops]
        s.w = []; s.r = []; s.c = []; s.ab = []; s.sdata = []
        op = s.op
        s.mfma = op.startswith("v_mfma"); s.valu = op.startswith("v_") and not s.mfma
        s.trans = op.startswith(TRANS)
        s.vmem = op.startswith(("buffer_", "global_")); s.ds = op.startswith("ds_")
        s.lds_dma = s.vmem and (" lds" in t)
        s.passes = 8 if "32x32" in op else 4
        s.ws = 1
        if op == "s_nop": s.ws = int(ops[0], 0) + 1
        if s.label: s.ws = 0; return
        R = [regs(o) for o in ops]
        if s.mfma:
            s.w = R[0]; s.ab = R[1] + R[2]; s.c = R[3]; s.r = s.ab + s.c
        elif s.valu:
            if op.startswith("v_permlane") and "swap" in op: s.w = R[0] + R[1]; s.r = R[0] + R[1]
            elif op.startswith("v_cmp"): s.w = R[0]; s.r = sum(R[1:], [])
            elif "_co_" in op or op.startswith("v_mad_u64"): s.w = R[0] + R[1]; s.r = sum(R[2:], [])
            else:
                s.w = R[0]; s.r = sum(R[1:], [])
                if op.startswith(("v_fmac", "v_writelane")) or "PRESERVE" in t: s.r += R[0]
                if op.startswith("v_cndmask") and len(ops) == 3: s.r += [("s", "vcc")]
        elif s.vmem:
            if s.lds_dma: s.r = sum(R, []) + [("s", "m0")]
            elif "load" in op: s.w = R[0]; s.r = sum(R[1:], [])
            elif op.startswith("buffer_"):
                s.r = sum(R, []); s.sdata = R[0] if ("x3" in op or "x4" in op) else []
                if "atomic" in op and " sc0" in t: s.w = R[0]
            else: s.r = sum(R, []); s.sdata = R[1] if ("x3" in op or "x4" in op) else []
        elif s.ds:
            if "read" in op or "permute" in op or "swizzle" in op or "_rtn" in op: s.w = R[0]; s.r = sum(R[1:], [])
            else: s.r = sum(R, [])
        elif op.startswith("s_"):
            if op.startswith(("s_cmp", "s_cbranch", "s_branch", "s_waitcnt", "s_barrier", "s_nop", "s_endpgm", "s_setprio", "s_sleep")): s.r = sum(R, [])
            else: s.w = R[0] if R else []; s.r = sum(R[1:], [])
def need(p, c):
    n = 0
    pw = set(p.w)
    def hit(a, b): return bool(set(a) & set(b))
    if p.mfma:
        d = 12 if p.passes == 8 else 8
        if c.mfma:
            if hit(pw, c.ab): n = max(n, d)
            if hit(pw, c.c) and not (p.w == c.c and p.passes == c.passes): n = max(n, d - 2)
            if hit(pw, c.w) and not hit(pw, c.c): n = max(n, d - 2)
        elif (c.valu or c.vmem or c.ds) and (hit(pw, c.r) or hit(pw, c.w)): n = max(n, d)
        if c.valu and hit(p.c, c.w): n = max(n, 7 if p.passes == 8 else 3)
    if p.valu:
        vw = [x for x in p.w if x[0] != "s"]; sw = [x for x in p.w if x[0] == "s"]
        if c.mfma and hit(vw, c.r): n = max(n, 2)
        if c.op.startswith("v_permlane") and hit(vw, c.r): n = max(n, 2)
        if "dpp" in c.text and hit(vw, c.r): n = max(n, 2)
        if c.op.startswith(("v_readlane", "v_readfirstlane")) and hit(vw, c.r): n = max(n, 1)
        if p.trans and c.valu and not c.trans and hit(vw, c.r): n = max(n, 1)
        if p.trans and (c.vmem or c.ds) and hit(vw, c.r): n = max(n, 1)
        if ("sdwa" in p.op or "op_sel" in p.text) and c.valu and (hit(vw, c.r) or hit(vw, c.w)): n = max(n, 1)
        if sw:
            if c.vmem and hit(sw, c.r): n = max(n, 5)
            if c.valu and hit(sw, c.r): n = max(n, 4 if c.op.startswith(("v_readlane", "v_writelane")) else 2)
            if c.op.startswith("s_") and hit(sw, c.r): n = max(n, 2)
        if p.op.startswith("v_cmpx") and (c.mfma or c.op.startswith(("v_readlane", "v_readfirstlane", "v_permlane"))): n = max(n, 4)
    if p.op.startswith("s_") and ("s", "m0") in pw and c.lds_dma: n = max(n, 1)
    if p.sdata and hit(p.sdata, c.w): n = max(n, 2 if c.valu else 1)
    return n
class Asm:
    def __init__(s): s.L = []
    def __call__(s, text):
        for l in text.split("\n"):
            if l.strip(): s.L.append(l.strip())
    def finish(s, verbose=False):
        ins = [I(l) for l in s.L]
        labels = {i.text.split(":")[0].strip(): k for k, i in enumerate(ins) if i.text.split(";")[0].strip().endswith(":")}
        preds = {}
        for k, i in enumerate(ins):
            if i.op.startswith(("s_cbranch", "s_branch")):
                tgt = i.text.split(";")[0].split()[1]
                preds.setdefault(labels[tgt], []).append(k)
        pad = [0] * len(ins)
        def back(k, dist, c, seen):
            req = 0
            while k >= 0 and dist < 20:
                p = ins[k]
                if p.label:
                    for b in preds.get(k, []):
                        if (b, dist) not in seen:
                            seen.add((b, dist)); req = max(req, back(b, dist, c, seen))
                else:
                    req = max(req, need(p, c) - dist)
                    dist += p.ws
                    if p.op in ("s_branch", "s_endpgm") and dist > p.ws: break
                dist += pad[k]
                k -= 1
                if k >= 0 and ins[k].op in ("s_branch", "s_endpgm"): break
            return req
        npad = 0
        for _ in range(2):
            for k, c in enumerate(ins):
                if c.label: continue
                r = back(k - 1, pad[k], c, set())
                if r > 0: pad[k] += r; npad += r
        out = []
        for k, i in enumerate(ins):
            p = pad[k]
            while p > 0:
                q = min(p, 16); out.append(f"  s_nop {q-1}"); p -= q
            out.append(i.text if i.label else "  " + i.text)
        if verbose: print("padded states:", npad)
        return "\n".join(out) + "\n"
def vr(b, n=1): return f"v{b}" if n == 1 else f"v[{b}:{b+n-1}]"
def sr(b, n=1): return f"s{b}" if n == 1 else f"s[{b}:{b+n-1}]"
def kernel(name, body, vgpr, sgpr=96):
    acc = (vgpr + 3) // 4 * 4
    return (f".text\n.globl {name}\n.p2align 8\n.type {name},@function\n{name}:\n{body}"
            f".section .rodata,\"a\"\n.p2align 6\n.amdhsa_kernel {name}\n  .amdhsa_next_free_vgpr {vgpr}\n  .amdhsa_next_free_sgpr {sgpr}\n"
            f"  .amdhsa_accum_offset {acc}\n  .amdhsa_group_segment_fixed_size 0\n  .amdhsa_kernarg_size 80\n  .amdhsa_user_sgpr_count 2\n"
            f"  .amdhsa_user_sgpr_kernarg_segment_ptr 1\n  .amdhsa_system_sgpr_workgroup_id_x 1\n.end_amdhsa_kernel\n")
```

```python
import sys, struct
sys.path.insert(0, "dev")
from asmlib import *
def f2u(x): return struct.unpack("<I", struct.pack("<f", x))[0]
LOG2E = 1.4426950408889634
HSZ = 2048 * 48
QOFF, KOFF, VOFF = 0, 32 * HSZ, 64 * HSZ
OAOFF = 96 * HSZ; OBOFF = OAOFF + 2048 * 1280
KVOFF = OBOFF + 2048 * 1280; KVP = 21 * 160
WSEND = KVOFF + 32 * 16 * KVP
def srd(a, d, b, n, add=0):
    if add: a(f"s_add_u32 s{d}, s{b}, {add}\ns_addc_u32 s{d+1}, s{b+1}, 0")
    else: a(f"s_mov_b32 s{d}, s{b}\ns_mov_b32 s{d+1}, s{b+1}")
    a(f"s_mov_b32 s{d+2}, {n}\ns_mov_b32 s{d+3}, 0x20000")
def table(a, dst, idx, vals, bits, t, sp):
    x = 0
    for i, v in enumerate(vals): x |= v << (bits * i)
    a(f"s_mov_b32 s{sp}, {x & 0xffffffff}\ns_mov_b32 s{sp+1}, {x >> 32}")
    a(f"v_mul_u32_u24 v{dst}, {bits}, v{idx}\nv_lshrrev_b64 v[{t}:{t+1}], v{dst}, s[{sp}:{sp+1}]\nv_and_b32 v{dst}, {(1 << bits) - 1}, v{t}")
AB, XB, WA, XA, WV, XV0, XV1, LN, T0 = 64, 96, 104, 108, 112, 113, 114, 115, 116
SPAIR, SWROW, SXROW, SM0, ST, SW = 20, 24, 25, 26, 27, 29
def gemm(a, T, NS, gmap, cmap, wpitch, SRDW, SRDX, pre=None):
    t, t2, r = T0, T0 + 2, T0 + 3
    a(f"v_lshrrev_b32 v{r}, 4, v{LN}\nv_lshlrev_b32 v{t2}, 2, v{r}\nv_xor_b32 v{t2}, v{t2}, v{LN}\nv_and_b32 v{t2}, 15, v{t2}")
    parts = [g[0] if g else 3 if wpitch != 3840 else 0 for g in gmap]; js = [g[1] if g else 0 for g in gmap]
    table(a, WV, t2, parts, 2, t, SPAIR)
    if wpitch == 3840: a(f"v_mul_u32_u24 v{WV}, 1280, v{WV}")
    else: a(f"v_lshlrev_b32 v{WV}, 28, v{WV}")
    table(a, XV0, t2, js, 4, t, SPAIR)
    a(f"v_lshl_add_u32 v{WV}, v{XV0}, 4, v{WV}\ns_mov_b32 s{ST}, {wpitch}\nv_mad_u32_u24 v{WV}, v{r}, s{ST}, v{WV}")
    a(f"v_and_b32 v{t}, 7, v{LN}\nv_xor_b32 v{t}, v{t}, v{r}\nv_lshrrev_b32 v{t2}, 3, v{LN}\nv_mul_u32_u24 v{t2}, 1280, v{t2}")
    a(f"v_lshl_add_u32 v{XV0}, v{t}, 4, v{t2}\nv_xor_b32 v{XV1}, 64, v{XV0}")
    a(f"s_mul_i32 s{ST}, s{SW}, {16 * wpitch}\ns_add_u32 s{SWROW}, s{SWROW}, s{ST}\ns_mul_i32 s{ST}, s{SW}, {32 * 1280}\ns_add_u32 s{SXROW}, s{SXROW}, s{ST}\ns_lshl_b32 s{SM0}, s{SW}, 12")
    def dma(S):
        L = []; b = (S % NS) * 32768
        for i in range(4):
            L.append(f"s_add_u32 m0, s{SM0}, {b + i * 1024}\ns_add_u32 s{ST}, s{SWROW}, {(S * 64 + 4 * i) * wpitch}\nbuffer_load_dwordx4 v{WV}, {sr(SRDW, 4)}, s{ST} offen lds")
            L.append(f"s_add_u32 m0, s{SM0}, {b + 16384 + i * 1024}\ns_add_u32 s{ST+1}, s{SXROW}, {8 * i * 1280 + S * 128}\nbuffer_load_dwordx4 v{XV1 if i & 1 else XV0}, {sr(SRDX, 4)}, s{ST+1} offen lds")
        return L
    for S in range(NS):
        for d in dma(S): a(d)
    if pre: pre()
    a(f"v_lshrrev_b32 v{t2}, 2, v{LN}\nv_and_b32 v{r}, 3, v{t2}\nv_and_b32 v{t2}, 4, v{t2}\nv_and_b32 v{t}, 3, v{LN}\nv_or_b32 v{T0+4}, v{t2}, v{t}")
    a(f"v_lshrrev_b32 v{t2}, 5, v{LN}\nv_lshl_add_u32 v{t2}, v{t2}, 3, v{r}\nv_lshlrev_b32 v{T0+5}, 8, v{t2}\nv_lshlrev_b32 v{r}, 3, v{r}")
    for tt in range(T):
        vals = []
        for e in range(8):
            u, h = 4 * tt + 2 * (e >> 2) + ((e & 3) >> 1), e & 1
            bs, sub = cmap(u, h); vals.append(bs * 2 + sub)
        table(a, WA + tt, T0 + 4, vals, 8, t, SPAIR)
        a(f"v_xor_b32 v{WA+tt}, v{WA+tt}, v{r}\nv_lshl_add_u32 v{WA+tt}, v{WA+tt}, 3, v{T0+5}")
    a(f"v_and_b32 v{t}, 31, v{LN}\nv_lshlrev_b32 v{t}, 7, v{t}\nv_lshrrev_b32 v{t2}, 1, v{LN}\nv_and_b32 v{t2}, 7, v{t2}\nv_lshrrev_b32 v{r}, 5, v{LN}\nv_xor_b32 v{t2}, v{t2}, v{r}")
    a(f"v_lshl_add_u32 v{t}, v{t2}, 4, v{t}\ns_add_u32 s{ST}, s{SM0}, 16384\nv_add_u32 v{XA}, s{ST}, v{t}")
    for ks in range(1, 4): a(f"v_xor_b32 v{XA+ks}, {32 * ks}, v{XA}")
    def flip():
        for i in list(range(WA, WA + T)) + list(range(XA, XA + 4)): a(f"v_xor_b32 v{i}, 0x10000, v{i}")
    def reads(n):
        s, ks = divmod(n, 4); b = (s % 2) * 32768; p = n & 1
        a(f"ds_read_b128 {vr(XB + 4 * p, 4)}, v{XA+ks} offset:{b}")
        for tt in range(T):
            for q in range(2): a(f"ds_read_b64_tr_b16 {vr(AB + 16 * p + 4 * tt + 2 * q, 2)}, v{WA+tt} offset:{b + (16 * ks + 4 * q) * 256}")
    npre = pre.n if pre else 0
    a(f"s_waitcnt vmcnt({8 * (NS - 1) + npre})\ns_barrier")
    reads(0)
    R = 1 + 2 * T
    for n in range(40):
        s, ks = divmod(n, 4); p = n & 1
        def mf(tt): a(f"v_mfma_f32_32x32x16_bf16 {vr(16 * tt, 16)}, {vr(AB + 16 * p + 4 * tt, 4)}, {vr(XB + 4 * p, 4)}, {vr(16 * tt, 16) if n else 0}")
        a(f"s_waitcnt lgkmcnt({2 * (T - 1)})"); mf(0)
        if n == 39:
            for tt in range(1, T): a(f"s_waitcnt lgkmcnt({2 * (T - 1 - tt)})"); mf(tt)
        elif ks < 3:
            reads(n + 1)
            for tt in range(1, T): a(f"s_waitcnt lgkmcnt({2 * (T - 1 - tt) + R})"); mf(tt)
        else:
            a(f"s_waitcnt vmcnt({8 * (min(s + NS - 1, 9) - s - 1)}) lgkmcnt(0)\ns_barrier")
            if NS == 4 and s & 1: flip()
            reads(n + 1)
            D = dma(s + NS) if s + NS <= 9 else []
            for tt in range(1, T):
                mf(tt)
                k = (len(D) + T - 2) // (T - 1)
                for d in D[(tt - 1) * k: tt * k]: a(d)
QKV_G = [(0, 0), (0, 1), (1, 0), (1, 1), (0, 2), (0, 3), (1, 2), (1, 3), (0, 4), (1, 4), (2, 0), (2, 2), (2, 1), (2, 4), None, (2, 3)]
def qkv_c(u, h):
    if u == 15: return 14, h
    part, ch = (h, u) if u < 10 else (2, u - 10 + 5 * h)
    return QKV_G.index((part, ch >> 1)), ch & 1
OUT_G = [(0, 0), (0, 1), (0, 5), (0, 6), (0, 2), (0, 3), (0, 7), (0, 8), (0, 4), (0, 9)] + [None] * 6
def out_c(u, h):
    if u >= 10: return 10 + h, u & 1
    return OUT_G.index((0, 5 * h + (u >> 1))), u & 1
def head(a, n, L):
    a(f"s_cmp_ge_u32 s2, {n}\ns_cbranch_scc1 {L}_end\nv_lshrrev_b32 v1, 6, v0\nv_and_b32 v{LN}, 63, v0\nv_readfirstlane_b32 s{SW}, v1")
def k1():
    a = Asm(); head(a, 256, "k1")
    a("s_load_dwordx4 s[4:7], s[0:1], 0\ns_load_dwordx2 s[30:31], s[0:1], 72")
    a("s_and_b32 s3, s2, 3\ns_lshl_b32 s3, s3, 2\ns_bfe_u32 s32, s2, 0x20003\ns_add_u32 s32, s32, s3")
    a("s_bfe_u32 s3, s2, 0x10002\ns_lshl_b32 s3, s3, 3\ns_lshr_b32 s33, s2, 5\ns_add_u32 s33, s33, s3")
    a(f"s_mul_i32 s{SWROW}, s33, 80\ns_mul_i32 s{SXROW}, s32, {128 * 1280}\ns_waitcnt lgkmcnt(0)")
    srd(a, 8, 6, 640 * 3840); srd(a, 12, 4, 2048 * 1280); srd(a, 16, 30, WSEND)
    gemm(a, 4, 4, QKV_G, qkv_c, 3840, 8, 12)
    t = T0
    a(f"v_lshrrev_b32 v{t}, 5, v{LN}\nv_and_b32 v{t+1}, 31, v{LN}\ns_lshl_b32 s3, s32, 7\ns_lshl_b32 s34, s{SW}, 5\ns_add_u32 s3, s3, s34\nv_add_u32 v{t+1}, s3, v{t+1}\nv_mul_u32_u24 v{t+1}, 48, v{t+1}")
    a(f"s_mov_b32 s3, {KOFF}\nv_mad_u32_u24 v{t+2}, v{t}, s3, v{t+1}\ns_mov_b32 s3, {HSZ}\nv_mad_u32_u24 v{t+3}, v{t}, s3, v{t+1}")
    a(f"v_mov_b32 v{t+4}, {f2u(LOG2E / 20 ** 0.5)}\nv_cmp_eq_u32 vcc, 0, v{t}\nv_cndmask_b32 v{t+4}, 1.0, v{t+4}, vcc")
    a(f"s_mul_i32 s34, s33, {2 * HSZ}\ns_add_u32 s35, s34, {HSZ}\ns_add_u32 s36, s34, {VOFF}")
    for n in range(3):
        p = 64 + 12 * n
        a(f"v_mov_b32 v{p+10}, 0x3f803f80\nv_mov_b32 v{p+11}, 0x3f80")
        for i in range(10):
            x = 20 * n + 2 * i
            if n < 2: a(f"v_mul_f32 v{x}, v{t+4}, v{x}\nv_mul_f32 v{x+1}, v{t+4}, v{x+1}")
            a(f"v_cvt_pk_bf16_f32 v{p+i}, v{x}, v{x+1}")
        for q in range(3): a(f"buffer_store_dwordx4 {vr(p + 4 * q, 4)}, v{t + 2 + (n == 2)}, s[16:19], s{34+n} offen offset:{16 * q}")
    a("k1_end:\ns_endpgm")
    return kernel("k1_kernel", a.finish(), 128)
def k3():
    a = Asm(); head(a, 256, "k3")
    a("s_bfe_u32 s33, s2, 0x10002\ns_load_dwordx2 s[4:5], s[0:1], 48")
    a("s_load_dwordx2 s[6:7], s[0:1], 16\ns_load_dwordx2 s[30:31], s[0:1], 72\ns_load_dwordx2 s[36:37], s[0:1], 56")
    a("s_and_b32 s3, s2, 3\ns_lshl_b32 s3, s3, 2\ns_bfe_u32 s32, s2, 0x20003\ns_add_u32 s32, s32, s3\ns_lshr_b32 s34, s2, 5")
    a(f"s_mul_i32 s{SWROW}, s34, 160\ns_mul_i32 s{SXROW}, s32, {128 * 1280}\ns_mul_i32 s3, s33, {2048 * 1280}\ns_add_u32 s3, s3, {OAOFF}\ns_add_u32 s{SXROW}, s{SXROW}, s3\ns_waitcnt lgkmcnt(0)\ns_cmp_eq_u32 s33, 0\ns_cselect_b32 s6, s6, s4\ns_cselect_b32 s7, s7, s5")
    srd(a, 8, 6, 640 * 1280); srd(a, 12, 30, WSEND); srd(a, 16, 36, 2048 * 2560)
    gemm(a, 3, 4, OUT_G, out_c, 1280, 8, 12)
    t = T0
    a(f"v_lshrrev_b32 v{t}, 5, v{LN}\nv_and_b32 v{t+1}, 31, v{LN}\ns_lshl_b32 s3, s32, 7\ns_lshl_b32 s35, s{SW}, 5\ns_add_u32 s3, s3, s35\nv_add_u32 v{t+1}, s3, v{t+1}\nv_mul_u32_u24 v{t+1}, 2560, v{t+1}")
    a(f"v_mul_u32_u24 v{t}, 80, v{t}\nv_add_u32 v{t}, v{t}, v{t+1}\ns_mul_i32 s35, s33, 1280\ns_mul_i32 s3, s34, 160\ns_add_u32 s35, s35, s3")
    for i in range(20):
        a(f"v_cvt_pk_bf16_f32 v{64+i}, v{2*i}, v{2*i+1}")
        if i % 4 == 3: a(f"buffer_store_dwordx4 {vr(64 + i - 3, 4)}, v{t}, s[16:19], s35 offen offset:{4 * (i - 3)}")
    a("k3_end:\ns_endpgm")
    return kernel("k3_kernel", a.finish(), 128)
MF = "v_mfma_f32_32x32x16_bf16"
CH = 24576
def attn(a):
    S = [0, 16]; O, P, K0, K1, V0, V1, Q0, Q1 = 32, 48, 56, 60, 64, 68, 72, 76
    KA0, KA1, VA, DV, KV0, KV1, M, t = 80, 81, 82, 83, 84, 85, 86, 88
    a("s_load_dwordx2 s[30:31], s[0:1], 72")
    a("s_and_b32 s3, s2, 7\ns_lshl_b32 s3, s3, 2\ns_bfe_u32 s32, s2, 0x20003\ns_add_u32 s32, s32, s3\ns_lshr_b32 s33, s2, 5")
    a(f"s_mul_i32 s38, s32, {HSZ}\ns_mov_b32 s37, 0")
    a(f"v_and_b32 v{t}, 31, v{LN}\nv_lshrrev_b32 v{t+1}, 5, v{LN}\nv_mul_u32_u24 v{t}, 48, v{t}\nv_lshl_add_u32 v{KV0}, v{t+1}, 4, v{t}\nv_add_u32 v{KV1}, 32, v{t}")
    a(f"v_lshlrev_b32 v{DV}, 4, v{LN}\nv_lshlrev_b32 v{t+2}, 30, v{t+1}\nv_add_u32 v{t+2}, v{t+2}, v{KV1}")
    a(f"s_lshl_b32 s3, s33, 3\ns_add_u32 s3, s3, s{SW}\ns_mul_i32 s39, s3, {32 * 48}\ns_add_u32 s39, s39, s38")
    a(f"s_lshr_b32 s40, s{SW}, 2\ns_mul_i32 s40, s40, {VOFF - KOFF}\ns_and_b32 s3, s{SW}, 3\ns_mul_i32 s3, s3, 3072\ns_add_u32 s40, s40, s3\ns_add_u32 s40, s40, s38\ns_add_u32 s40, s40, {KOFF}")
    a(f"s_mul_i32 s41, s{SW}, 3072\ns_waitcnt lgkmcnt(0)")
    srd(a, 16, 30, WSEND)
    def dma():
        a("s_mov_b32 m0, s35")
        for j in range(3): a(f"buffer_load_dwordx4 v{DV}, s[16:19], s34 offen offset:{1024 * j} lds")
    a(f"buffer_load_dwordx4 {vr(Q0, 4)}, v{KV0}, s[16:19], s39 offen\nbuffer_load_dwordx2 {vr(Q1, 2)}, v{t+2}, s[16:19], s39 offen")
    a(f"v_mov_b32 v{t}, 0\nv_mov_b32 v{t+1}, {3 * CH}\nds_write_b32 v{t+1}, v{t}")
    a("at_start:\ns_mov_b32 s34, s40\ns_mov_b32 s35, s41"); dma()
    a(f"s_add_u32 s42, s38, {KOFF}\ns_lshl_b32 s43, s37, 6\ns_max_u32 s43, s43, 1\nv_mov_b32 v{M}, 0xff800000\nv_mov_b32 v{Q1+2}, 0\nv_mov_b32 v{Q1+3}, 0")
    a(f"at_max:\nbuffer_load_dwordx4 {vr(K0, 4)}, v{KV0}, s[16:19], s42 offen\nbuffer_load_dwordx4 {vr(K1, 4)}, v{KV1}, s[16:19], s42 offen")
    a(f"s_add_u32 s42, s42, 1536\ns_sub_u32 s43, s43, 1\ns_waitcnt vmcnt(0)")
    a(f"{MF} {vr(0, 16)}, {vr(K0, 4)}, {vr(Q0, 4)}, 0\n{MF} {vr(0, 16)}, {vr(K1, 4)}, {vr(Q1, 4)}, {vr(0, 16)}")
    for i in range(8): a(f"v_max3_f32 v{M}, v{M}, v{2*i}, v{2*i+1}")
    a("s_cmp_lg_u32 s43, 0\ns_cbranch_scc1 at_max\ns_barrier")
    a(f"s_add_u32 s34, s34, {CH // 2}\ns_add_u32 s35, s35, {CH}"); dma()
    a(f"v_mov_b32 v{KA0}, v{KV0}\nv_mov_b32 v{KA1}, v{KV1}\nv_mov_b32 v{t}, v{M}\nv_permlane32_swap_b32 v{M}, v{t}\nv_max_f32 v{M}, v{M}, v{t}")
    a(f"v_xor_b32 v{M}, 0x80000000, v{M}\nv_and_b32 v{t}, 0xffff0000, v{M}\nv_sub_f32 v{M}, v{M}, v{t}\nv_and_b32 v{t+1}, 0xffff0000, v{M}\nv_sub_f32 v{M}, v{M}, v{t+1}")
    a(f"v_lshrrev_b32 v{t}, 16, v{t}\nv_or_b32 v{t}, v{t}, v{t+1}\nv_lshrrev_b32 v{M}, 16, v{M}\nv_cmp_gt_u32 vcc, 32, v{LN}\nv_cndmask_b32 v{Q1+2}, 0, v{t}, vcc\nv_cndmask_b32 v{Q1+3}, 0, v{M}, vcc")
    a(f"ds_read_b128 {vr(K0, 4)}, v{KA0}\nds_read_b128 {vr(K1, 4)}, v{KA1}")
    a(f"v_lshrrev_b32 v{t}, 2, v{LN}\nv_and_b32 v{t+1}, 3, v{t}\nv_and_b32 v{t}, 4, v{t}\nv_and_b32 v{t+2}, 3, v{LN}\nv_or_b32 v{t+4}, v{t}, v{t+2}")
    a(f"v_lshrrev_b32 v{t}, 5, v{LN}\nv_lshl_add_u32 v{t+1}, v{t}, 2, v{t+1}\nv_mul_u32_u24 v{t+5}, 48, v{t+1}")
    table(a, VA, t + 4, [0, 3, 1, 4, 2, 5, 5, 5], 4, t + 2, SPAIR)
    a(f"v_lshl_add_u32 v{VA}, v{VA}, 3, v{t+5}\nv_add_u32 v{VA}, {CH // 2}, v{VA}")
    for i in range(16): a(f"v_mov_b32 v{O+i}, 0")
    for i in range(4): a(f"v_mov_b32 v{P+4+i}, 0\nv_mov_b32 v{V1+i}, 0")
    a(f"s_waitcnt lgkmcnt(0)\n{MF} {vr(0, 16)}, {vr(K0, 4)}, {vr(Q0, 4)}, 0\n{MF} {vr(0, 16)}, {vr(K1, 4)}, {vr(Q1, 4)}, {vr(0, 16)}")
    a(f"ds_read_b128 {vr(K0, 4)}, v{KA0} offset:1536\nds_read_b128 {vr(K1, 4)}, v{KA1} offset:1536")
    a(f"s_movk_i32 s46, {CH}\ns_mov_b32 s36, 0\ns_mov_b32 s44, 0\ns_mov_b32 s45, 0\ns_waitcnt lgkmcnt(0)\nat_loop:")
    def ex(c, q):
        for i in range(4): a(f"v_exp_f32 v{c+4*q+i}, v{c+4*q+i}")
        a(f"v_cvt_pk_bf16_f32 v{P+2*q}, v{c+4*q}, v{c+4*q+1}\nv_cvt_pk_bf16_f32 v{P+2*q+1}, v{c+4*q+2}, v{c+4*q+3}")
    def vrd(d, u, s):
        for p in range(2): a(f"ds_read_b64_tr_b16 {vr(d + 2 * p, 2)}, v{VA} offset:{u * 1536 + (16 * s + 8 * p) * 48}")
    W = "s_waitcnt lgkmcnt(3)\n"
    for u in range(8):
        c, n = S[u & 1], S[1 - (u & 1)]; ko = ((u + 2) & 7) * 1536
        if u == 0: a(f"v_add_u32 v{VA}, s45, v{VA}")
        a(W + f"{MF} {vr(n, 16)}, {vr(K0, 4)}, {vr(Q0, 4)}, 0"); vrd(V0, u, 0)
        if u == 6:
            a(f"s_add_u32 s44, s44, 1\ns_cmp_eq_u32 s44, 3\ns_cselect_b32 s45, {-2 * CH}, s46\ns_cselect_b32 s44, 0, s44\nv_add_u32 v{KA0}, s45, v{KA0}\nv_add_u32 v{KA1}, s45, v{KA1}")
            a(f"s_add_u32 s34, s34, {CH // 2}\ns_add_u32 s35, s35, {CH}\ns_cmp_eq_u32 s44, 2\ns_cselect_b32 s35, s41, s35")
        ex(c, 0)
        if u == 6:
            a("s_waitcnt vmcnt(0)\ns_barrier\ns_cmp_ge_u32 s36, 6\ns_cbranch_scc1 at_nodma"); dma(); a("at_nodma:")
        a(W + f"{MF} {vr(O, 16)}, {vr(V1, 4)}, {vr(P + 4, 4)}, {vr(O, 16)}\nds_read_b128 {vr(K0, 4)}, v{KA0} offset:{ko}"); ex(c, 1)
        a(W + f"{MF} {vr(n, 16)}, {vr(K1, 4)}, {vr(Q1, 4)}, {vr(n, 16)}"); vrd(V1, u, 1); ex(c, 2)
        a(W + f"{MF} {vr(O, 16)}, {vr(V0, 4)}, {vr(P, 4)}, {vr(O, 16)}\nds_read_b128 {vr(K1, 4)}, v{KA1} offset:{ko}"); ex(c, 3)
    a("s_add_u32 s36, s36, 1\ns_cmp_lt_u32 s36, 8\ns_cbranch_scc1 at_loop")
    a(f"s_waitcnt lgkmcnt(0)\n{MF} {vr(O, 16)}, {vr(V1, 4)}, {vr(P + 4, 4)}, {vr(O, 16)}")
    a(f"v_and_b32 v{t}, 31, v{LN}\nv_lshrrev_b32 v{t+1}, 5, v{LN}\nv_mul_u32_u24 v{t}, 1280, v{t}\nv_mad_u32_u24 v{t}, v{t+1}, 24, v{t}\nv_lshl_add_u32 v{t+1}, v{t+1}, 30, v{t}")
    a(f"s_lshl_b32 s3, s33, 3\ns_add_u32 s3, s3, s{SW}\ns_mul_i32 s3, s3, {32 * 1280}\ns_mul_i32 s42, s32, 40\ns_add_u32 s42, s42, s3\ns_add_u32 s42, s42, {OAOFF}")
    a(f"v_mov_b32 v{t+2}, {f2u(2.0 ** 40)}\nv_mov_b32 v{t+3}, {3 * CH}\nv_mov_b32 v{t+4}, 1")
    a(f"v_cmp_nlt_f32 vcc, v{O+12}, v{t+2}\nv_rcp_f32 v{M}, v{O+12}\ns_cbranch_vccz at_ok\nds_write_b32 v{t+3}, v{t+4}\nat_ok:")
    for i in range(6): a(f"v_mul_f32 v{O+2*i}, v{M}, v{O+2*i}\nv_mul_f32 v{O+2*i+1}, v{M}, v{O+2*i+1}\nv_cvt_pk_bf16_f32 v{P+i}, v{O+2*i}, v{O+2*i+1}")
    a(f"buffer_store_dwordx4 {vr(P, 4)}, v{t}, s[16:19], s42 offen\nbuffer_store_dwordx2 {vr(P + 4, 2)}, v{t+1}, s[16:19], s42 offen offset:16")
    a(f"s_cmp_lg_u32 s37, 0\ns_cbranch_scc1 k2_end\ns_waitcnt lgkmcnt(0)\ns_barrier\nds_read_b32 v{t}, v{t+3}\ns_waitcnt lgkmcnt(0)\nv_readfirstlane_b32 s37, v{t}")
    a("s_cmp_lg_u32 s37, 0\ns_cbranch_scc1 at_start\ns_endpgm")
WPH, ZR, PHK, VP, KVB = 65536, 67584, 0, 20480, 32768
def brole(a):
    a(f"s_cmp_ge_u32 s{SW}, 4\ns_cbranch_scc1 k2_end")
    a("s_load_dwordx4 s[4:7], s[0:1], 24\ns_load_dwordx2 s[36:37], s[0:1], 40\ns_load_dwordx4 s[48:51], s[0:1], 64")
    a("s_and_b32 s3, s2, 3\ns_lshl_b32 s3, s3, 2\ns_bfe_u32 s32, s2, 0x20003\ns_add_u32 s32, s32, s3")
    a("s_bfe_u32 s3, s2, 0x10002\ns_lshl_b32 s3, s3, 3\ns_bfe_u32 s33, s2, 0x30005\ns_add_u32 s33, s33, s3")
    a(f"s_mul_i32 s{SWROW}, s33, 80\ns_mul_i32 s{SXROW}, s32, {128 * 1280}\ns_waitcnt lgkmcnt(0)")
    srd(a, 8, 6, 640 * 3840); srd(a, 12, 4, 2048 * 1280); srd(a, 16, 50, WSEND); srd(a, 40, 36, 25600); srd(a, 44, 48, 256)
    t = T0
    def pre():
        a(f"s_and_b32 s3, s{SW}, 1\ns_lshl_b32 s3, s3, 10\ns_add_u32 m0, s3, {WPH}\ns_mul_i32 s34, s33, 1600\ns_add_u32 s34, s34, s3\nv_lshlrev_b32 v{t}, 4, v{LN}")
        a(f"buffer_load_dwordx4 v{t}, s[40:43], s34 offen lds")
        a(f"s_lshl_b32 s3, s{SW}, 9\ns_add_u32 s3, s3, {ZR}\nv_lshl_add_u32 v{t+1}, v{LN}, 3, s3\nv_mov_b32 v{t+2}, 0\nv_mov_b32 v{t+3}, 0\nds_write_b64 v{t+1}, {vr(t + 2, 2)}")
    pre.n = 1
    gemm(a, 4, 2, QKV_G, qkv_c, 3840, 8, 12, pre)
    H, G1, R, C = 104, 105, 106, 107
    a(f"v_lshrrev_b32 v{H}, 5, v{LN}\nv_bfe_u32 v{G1}, v{LN}, 4, 1\nv_bfe_u32 v{R}, v{LN}, 2, 2\nv_and_b32 v{C}, 3, v{LN}")
    a(f"v_and_b32 v{t}, 1, v{C}\nv_cmp_eq_u32 vcc, v{t}, v{H}\nv_lshrrev_b32 v{t}, 1, v{C}\nv_lshl_add_u32 v{t}, v{G1}, 1, v{t}\nv_mul_u32_u24 v{t+1}, 40, v{R}")
    a(f"v_lshl_add_u32 v{t+2}, v{t}, 3, v{t+1}\nv_add_u32 v{t+2}, {WPH}, v{t+2}\nv_mov_b32 v{t+3}, {ZR}\nv_cndmask_b32 v108, v{t+3}, v{t+2}, vcc")
    a(f"v_cmp_eq_u32 s[34:35], 0, v{t}\ns_and_b64 vcc, vcc, s[34:35]\nv_add_u32 v{t+2}, 32, v{t+2}\nv_cndmask_b32 v109, v{t+3}, v{t+2}, vcc")
    for n in range(3):
        p = 64 + 12 * n
        for i in range(10): a(f"v_cvt_pk_bf16_f32 v{p+i}, v{20*n+2*i}, v{20*n+2*i+1}")
        a(f"v_mov_b32 v{p+10}, {0x3f80 if n == 2 else 0}\nv_mov_b32 v{p+11}, 0")
    a(f"v_and_b32 v110, 31, v{LN}\ns_lshl_b32 s3, s{SW}, 5\nv_add_u32 v110, s3, v110")
    a(f"v_mul_u32_u24 v{t}, 48, v110\nv_mul_u32_u24 v{t+1}, 6144, v{H}\ns_movk_i32 s3, {VP}\nv_add3_u32 v{t}, v{t}, v{t+1}, s3\ns_barrier")
    for q in range(3): a(f"ds_write_b128 v{t}, {vr(88 + 4 * q, 4)} offset:{16 * q}")
    for n in range(2):
        for T in range(2):
            for s in range(3):
                A = 88 + 4 * ((2 * n + T + s) % 3)
                if T == 0 and s == 0 and n == 0: a("s_waitcnt lgkmcnt(0)")
                a(f"ds_read_b64_tr_b16 {vr(A, 2)}, v{108+T} offset:{800 * n + 320 * s}")
                if s < 2: a(f"ds_read_b64_tr_b16 {vr(A + 2, 2)}, v{108+T} offset:{800 * n + 320 * s + 160}")
                else: a(f"v_mov_b32 v{A+2}, 0\nv_mov_b32 v{A+3}, 0")
                d = 32 * n + 16 * T
                a(f"s_waitcnt lgkmcnt(0)\n{MF} {vr(d, 16)}, {vr(A, 4)}, {vr(64 + 12 * n + 4 * s, 4)}, {vr(d, 16) if s else 0}")
    MX, MN, SP, SN = t, t + 1, t + 2, t + 3
    a(f"s_mov_b32 s3, {f2u(LOG2E)}")
    for n in range(2):
        x = 32 * n; e = 32 * (1 - n) + 20 if n == 0 else 0; Pn = 64 + 20 * n
        E = [120 + i if i < 8 else x + 20 + i - 8 for i in range(20)]
        a(f"v_max3_f32 v{MX}, v{x}, v{x+1}, v{x+2}\nv_min3_f32 v{MN}, v{x}, v{x+1}, v{x+2}")
        for i in range(3, 19, 2): a(f"v_max3_f32 v{MX}, v{MX}, v{x+i}, v{x+i+1}\nv_min3_f32 v{MN}, v{MN}, v{x+i}, v{x+i+1}")
        a(f"v_max_f32 v{MX}, v{MX}, v{x+19}\nv_min_f32 v{MN}, v{MN}, v{x+19}\nv_mul_f32 v{MX}, s3, v{MX}\nv_mul_f32 v{MN}, s3, v{MN}")
        for i in range(20): a(f"v_fma_f32 v{E[i]}, -v{x+i}, s3, v{MN}\nv_fma_f32 v{x+i}, v{x+i}, s3, -v{MX}")
        for i in range(20): a(f"v_exp_f32 v{E[i]}, v{E[i]}\nv_exp_f32 v{x+i}, v{x+i}")
        a(f"v_add_f32 v{SP}, v{x}, v{x+1}\nv_add_f32 v{SN}, v{E[0]}, v{E[1]}")
        for i in range(2, 20): a(f"v_add_f32 v{SP}, v{SP}, v{x+i}\nv_add_f32 v{SN}, v{SN}, v{E[i]}")
        a(f"v_rcp_f32 v{SP}, v{SP}\nv_rcp_f32 v{SN}, v{SN}")
        for i in range(20): a(f"v_mul_f32 v{x+i}, v{SP}, v{x+i}\nv_mul_f32 v{E[i]}, v{SN}, v{E[i]}")
        for i in range(10): a(f"v_cvt_pk_bf16_f32 v{Pn+i}, v{x+2*i}, v{x+2*i+1}\nv_cvt_pk_bf16_f32 v{Pn+10+i}, v{E[2*i]}, v{E[2*i+1]}")
    for i in range(20): a(f"v_permlane32_swap_b32 v{64+i}, v{84+i}")
    a(f"v_mul_u32_u24 v{t}, 80, v110\nv_mul_u32_u24 v{t+1}, 10240, v{H}\nv_add_u32 v{t}, v{t}, v{t+1}")
    for q in range(5): a(f"ds_write_b128 v{t}, {vr(84 + 4 * q, 4)} offset:{PHK + 16 * q}")
    a(f"s_lshr_b32 s34, s{SW}, 1\ns_and_b32 s35, s{SW}, 1\nv_lshl_add_u32 v{t}, v{H}, 3, v{R}\nv_lshl_add_u32 v{t+1}, v{G1}, 2, v{C}")
    a(f"s_lshl_b32 s3, s35, 3\nv_add_u32 v{t+2}, s3, v{t+1}\nv_min_u32 v{t+2}, 9, v{t+2}\nv_min_u32 v{t+1}, 5, v{t+1}")
    a(f"v_mul_u32_u24 v108, 80, v{t}\nv_lshl_add_u32 v108, v{t+2}, 3, v108\ns_mul_i32 s3, s34, 10240\nv_add_u32 v108, s3, v108")
    a(f"v_mul_u32_u24 v109, 48, v{t}\nv_lshl_add_u32 v109, v{t+1}, 3, v109\ns_mul_i32 s3, s34, 6144\ns_add_u32 s3, s3, {VP}\nv_add_u32 v109, s3, v109")
    a("s_waitcnt lgkmcnt(0)\ns_barrier")
    for hf in range(2):
        for s in range(4 * hf, 4 * hf + 4):
            for p in range(2):
                a(f"ds_read_b64_tr_b16 {vr(16 + 8 * (s & 3) + 2 * p, 2)}, v108 offset:{(16 * s + 4 * p) * 80}")
                a(f"ds_read_b64_tr_b16 {vr(20 + 8 * (s & 3) + 2 * p, 2)}, v109 offset:{(16 * s + 4 * p) * 48}")
            if s & 3 == 2: a("s_waitcnt lgkmcnt(0)")
        a("s_waitcnt lgkmcnt(0)")
        for s in range(4 * hf, 4 * hf + 4): a(f"{MF} {vr(0, 16)}, {vr(16 + 8 * (s & 3), 4)}, {vr(20 + 8 * (s & 3), 4)}, {vr(0, 16) if s else 0}")
    a(f"v_and_b32 v{t}, 31, v{LN}\nv_cmp_lt_u32 vcc, 20, v{t}\nv_mul_u32_u24 v{t}, 160, v{t}\nv_lshl_add_u32 v{t}, v{H}, 4, v{t}\nv_mov_b32 v{t+1}, 0x40000000\nv_cndmask_b32 v{t}, v{t}, v{t+1}, vcc")
    a(f"s_lshl_b32 s3, s33, 1\ns_add_u32 s3, s3, s34\ns_lshl_b32 s3, s3, 4\ns_add_u32 s3, s3, s32\ns_mul_i32 s3, s3, {KVP}\ns_lshl_b32 s38, s35, 7\ns_add_u32 s3, s3, s38\ns_add_u32 s3, s3, {KVOFF}")
    a(f"buffer_store_dwordx4 {vr(0, 4)}, v{t}, s[16:19], s3 offen sc1\ns_cmp_eq_u32 s35, 1\ns_cbranch_scc1 b_st")
    for j in range(1, 4): a(f"buffer_store_dwordx4 {vr(4 * j, 4)}, v{t}, s[16:19], s3 offen offset:{32 * j} sc1")
    a(f"b_st:\ns_waitcnt vmcnt(0)\ns_barrier\ns_cmp_lg_u32 s{SW}, 0\ns_cbranch_scc1 b_go")
    a(f"s_lshl_b32 s3, s33, 4\nv_mov_b32 v{t}, 0\nv_mov_b32 v{t+1}, 1\ns_mov_b64 s[34:35], exec\ns_mov_b64 exec, 1\nbuffer_atomic_add v{t+1}, v{t}, s[44:47], s3 offen sc1")
    a(f"s_mov_b32 s39, 0\nb_poll:\ns_add_u32 s39, s39, 1\ns_cmp_ge_u32 s39, 0x40000\ns_cbranch_scc1 b_pe\nbuffer_load_dword v{t+1}, v{t}, s[44:47], s3 offen sc1\ns_waitcnt vmcnt(0)\nv_readfirstlane_b32 s38, v{t+1}\ns_cmp_lt_u32 s38, 16\ns_cbranch_scc1 b_poll\nb_pe:\ns_mov_b64 exec, s[34:35]\nb_go:\ns_barrier")
    a(f"s_lshl_b32 s3, s{SW}, 6\nv_add_u32 v111, s3, v{LN}\ns_mul_i32 s34, s33, {32 * KVP}\ns_add_u32 s34, s34, {KVOFF}")
    for rnd in range(2):
        a(f"v_cmp_le_u32 vcc, 210, v111\nv_cndmask_b32 v{t}, 0, 1, vcc\nv_mul_u32_u24 v{t+1}, {16 * KVP - 210 * 16}, v{t}\nv_lshl_add_u32 v{t+1}, v111, 4, v{t+1}")
        a(f"v_cmp_le_u32 vcc, 420, v111\nv_mov_b32 v{t+2}, 0x40000000\nv_cndmask_b32 v{t+1}, v{t+1}, v{t+2}, vcc\ns_mov_b32 s35, s34")
        for b in range(16): a(f"buffer_load_dwordx4 {vr(4 * b, 4)}, v{t+1}, s[16:19], s35 offen sc1\ns_add_u32 s35, s35, {KVP}")
        a(f"v_lshlrev_b32 v{t+3}, 3, v111\nv_add_u32 v{t+3}, {KVB}, v{t+3}\nv_add_u32 v111, 256, v111")
        for b in range(1, 16):
            a(f"s_waitcnt vmcnt({15 - b})")
            for i in range(4): a(f"v_add_f32 v{i}, v{i}, v{4*b+i}")
        a(f"v_cvt_pk_bf16_f32 v0, v0, v1\nv_cvt_pk_bf16_f32 v1, v2, v3\nds_write_b64 v{t+3}, v[0:1]")
    a(f"v_bfe_u32 v{t}, v{LN}, 2, 1\nv_cmp_eq_u32 vcc, v{t}, v{H}\nv_bfe_u32 v{t+1}, v{LN}, 3, 2\nv_lshl_add_u32 v{t+1}, v{t+1}, 2, v{C}")
    a(f"v_mul_u32_u24 v{t+2}, 80, v{t+1}\nv_mul_u32_u24 v{t}, 1680, v{H}\ns_mov_b32 s3, {KVB}\nv_add3_u32 v{t+2}, v{t+2}, v{t}, s3\nv_mov_b32 v{t+3}, {ZR}\nv_cndmask_b32 v108, v{t+3}, v{t+2}, vcc")
    a(f"v_cmp_ge_u32 s[34:35], 4, v{t+1}\ns_and_b64 vcc, vcc, s[34:35]\nv_add_u32 v{t+2}, 1280, v{t+2}\nv_cndmask_b32 v109, v{t+3}, v{t+2}, vcc\ns_waitcnt lgkmcnt(0)\ns_barrier")
    for T in range(2):
        for s in range(5): a(f"ds_read_b128 {vr(32 + 4 * s, 4)}, v{108+T} offset:{16 * s}")
        for s in range(5): a(f"s_waitcnt lgkmcnt({4 - s})\n{MF} {vr(16 * T, 16)}, {vr(32 + 4 * s, 4)}, {vr(64 + 4 * s, 4)}, {vr(16 * T, 16) if s else 0}")
    a(f"v_mul_u32_u24 v{t}, 1280, v110\nv_mad_u32_u24 v{t}, v{H}, 40, v{t}\ns_mul_i32 s3, s32, {128 * 1280}\ns_mul_i32 s34, s33, 80\ns_add_u32 s3, s3, s34\ns_add_u32 s3, s3, {OBOFF}")
    a(f"v_add_f32 v20, {f2u(1e-6)}, v20\nv_rcp_f32 v20, v20")
    for i in range(10): a(f"v_mul_f32 v{2*i}, v20, v{2*i}\nv_mul_f32 v{2*i+1}, v20, v{2*i+1}\nv_cvt_pk_bf16_f32 v{32+i}, v{2*i}, v{2*i+1}")
    a(f"buffer_store_dwordx4 v[32:35], v{t}, s[16:19], s3 offen\nbuffer_store_dwordx4 v[36:39], v{t}, s[16:19], s3 offen offset:16\nbuffer_store_dwordx2 v[40:41], v{t}, s[16:19], s3 offen offset:32")
def k2():
    a = Asm(); head(a, 512, "k2")
    a("s_cmp_ge_u32 s2, 256\ns_cbranch_scc1 k2_b")
    attn(a); a("k2_b:"); brole(a)
    a("k2_end:\ns_endpgm")
    return kernel("k2_kernel", a.finish(), 128)
if __name__ == "__main__":
    out = sys.argv[1] if len(sys.argv) > 1 else "concat_heads__mha_block__linear_kernel_hedgehog__prompt.s"
    ref = open("concat_heads__mha_block__linear_kernel_hedgehog__prompt.s.ref").read().split("\n")
    hdr = [l for l in ref if l.startswith(";") and "@launch" not in l and "Override" not in l and "grid=ceil" not in l][:11]
    hdr += ["; @launch kernel=k1_kernel grid=(256,1,1) block=(256,1,1) lds=131072",
            "; @launch kernel=k2_kernel grid=(512,1,1) block=(512,1,1) lds=73744",
            "; @launch kernel=k3_kernel grid=(256,1,1) block=(256,1,1) lds=131072", '.amdgcn_target "amdgcn-amd-amdhsa--gfx950"']
    open(out, "w").write("\n".join(hdr) + "\n" + k1() + k2() + k3())
```

```python
import sys, struct
sys.path.insert(0, "dev")
from asmlib import *
def f2u(x): return struct.unpack("<I", struct.pack("<f", x))[0]
LOG2E = 1.4426950408889634
HSZ = 2048 * 48
QOFF, KOFF, VOFF = 0, 32 * HSZ, 64 * HSZ
OAOFF = 96 * HSZ; OBOFF = OAOFF + 2048 * 1280
KVOFF = OBOFF + 2048 * 1280; KVP = 21 * 160
FLOFF = KVOFF + 32 * 16 * KVP
TSOFF = FLOFF + 512 * 512
WSEND = TSOFF + 512 * 64
import os
X = os.environ.get("X", "")
TS = int(os.environ.get("TS", "0"))
TSI = "s_memtime" if TS == 2 else "s_memrealtime"
def stamp(a, k):
    if TS: a(f"{TSI} s[{64+2*k}:{65+2*k}]\ns_waitcnt lgkmcnt(0)")
def tsout(a, kid, n, L):
    if not TS: return
    stamp(a, n - 1)
    a(f"s_cmp_lg_u32 s{29}, 0\ns_cbranch_scc1 {L}\ns_load_dwordx2 s[84:85], s[0:1], 72\ns_waitcnt lgkmcnt(0)")
    srd(a, 84, 84, WSEND)
    a(f"s_lshl_b32 s3, s2, 6\ns_add_u32 s3, s3, {TSOFF}\nv_mov_b32 v0, 0")
    for k in range(n): a(f"v_mov_b32 v1, s{64+2*k}\nbuffer_store_dword v1, v0, s[84:87], s3 offen offset:{4*k}")
    a(f"s_getreg_b32 s4, hwreg(HW_REG_HW_ID)\ns_getreg_b32 s5, hwreg(HW_REG_XCC_ID)\ns_and_b32 s5, s5, 15\ns_lshl_b32 s5, s5, 16\ns_bfe_u32 s4, s4, 0x80008\ns_or_b32 s4, s4, s5\nv_mov_b32 v1, s4\nbuffer_store_dword v1, v0, s[84:87], s3 offen offset:60\n{L}:")
def srd(a, d, b, n, add=0):
    if add: a(f"s_add_u32 s{d}, s{b}, {add}\ns_addc_u32 s{d+1}, s{b+1}, 0")
    else: a(f"s_mov_b32 s{d}, s{b}\ns_mov_b32 s{d+1}, s{b+1}")
    a(f"s_mov_b32 s{d+2}, {n}\ns_mov_b32 s{d+3}, 0x20000")
def table(a, dst, idx, vals, bits, t, sp):
    x = 0
    for i, v in enumerate(vals): x |= v << (bits * i)
    a(f"s_mov_b32 s{sp}, {x & 0xffffffff}\ns_mov_b32 s{sp+1}, {x >> 32}")
    a(f"v_mul_u32_u24 v{dst}, {bits}, v{idx}\nv_lshrrev_b64 v[{t}:{t+1}], v{dst}, s[{sp}:{sp+1}]\nv_and_b32 v{dst}, {(1 << bits) - 1}, v{t}")
AB, XB, WA, XA, WV, XV0, XV1, LN, T0 = 64, 96, 104, 108, 112, 113, 114, 115, 116
SPAIR, SWROW, SXROW, SM0, ST, SW = 20, 24, 25, 26, 27, 29
def gemm(a, T, NS, NW, gmap, cmaps, wpitch, SRDW, SRDX, pre=None, wait=None):
    t, t2, r = T0, T0 + 2, T0 + 3; nd = 32 // NW
    a(f"v_lshrrev_b32 v{r}, 4, v{LN}\nv_lshlrev_b32 v{t2}, 2, v{r}\nv_xor_b32 v{t2}, v{t2}, v{LN}\nv_and_b32 v{t2}, 15, v{t2}")
    parts = [g[0] if g else 3 if wpitch != 3840 else 0 for g in gmap]; js = [g[1] if g else 0 for g in gmap]
    table(a, WV, t2, parts, 2, t, SPAIR)
    if wpitch == 3840: a(f"v_mul_u32_u24 v{WV}, 1280, v{WV}")
    else: a(f"v_lshlrev_b32 v{WV}, 28, v{WV}")
    table(a, XV0, t2, js, 4, t, SPAIR)
    a(f"v_lshl_add_u32 v{WV}, v{XV0}, 3, v{WV}\ns_mov_b32 s{ST}, {wpitch}\nv_mad_u32_u24 v{WV}, v{r}, s{ST}, v{WV}")
    a(f"v_and_b32 v{t}, 7, v{LN}\nv_xor_b32 v{t}, v{t}, v{r}\nv_lshrrev_b32 v{t2}, 3, v{LN}\nv_mul_u32_u24 v{t2}, 1280, v{t2}")
    a(f"v_lshl_add_u32 v{XV0}, v{t}, 4, v{t2}\nv_xor_b32 v{XV1}, 64, v{XV0}")
    a(f"s_mul_i32 s{ST}, s{SW}, {64 // NW * wpitch}\ns_add_u32 s{SWROW}, s{SWROW}, s{ST}\ns_mul_i32 s{ST}, s{SW}, {128 // NW * 1280}\ns_add_u32 s{SXROW}, s{SXROW}, s{ST}\ns_mul_i32 s{SM0}, s{SW}, {16384 // NW}")
    def dma(S, sel=3):
        L = []; b = (S % NS) * 32768
        for i in range(nd // 2):
            if sel & 1: L.append(f"s_add_u32 m0, s{SM0}, {b + i * 1024}\ns_add_u32 s{ST}, s{SWROW}, {(S * 64 + 4 * i) * wpitch}\nbuffer_load_dwordx4 v{WV}, {sr(SRDW, 4)}, s{ST} offen lds")
            if sel & 2: L.append(f"s_add_u32 m0, s{SM0}, {b + 16384 + i * 1024}\ns_add_u32 s{ST+1}, s{SXROW}, {8 * i * 1280 + S * 128}\nbuffer_load_dwordx4 v{XV1 if i & 1 else XV0}, {sr(SRDX, 4)}, s{ST+1} offen lds")
        return L
    for S in range(NS):
        for d in dma(S, 1 if wait else 3): a(d)
    if pre: pre()
    a(f"v_lshrrev_b32 v{t2}, 2, v{LN}\nv_and_b32 v{r}, 3, v{t2}\nv_and_b32 v{t2}, 4, v{t2}\nv_and_b32 v{t}, 3, v{LN}\nv_or_b32 v{T0+4}, v{t2}, v{t}")
    a(f"v_lshrrev_b32 v{t2}, 5, v{LN}\nv_lshl_add_u32 v{t2}, v{t2}, 3, v{r}\nv_lshlrev_b32 v{T0+5}, 8, v{t2}\nv_lshlrev_b32 v{r}, 3, v{r}")
    for tt in range(T):
        for ci, cm in enumerate(cmaps):
            vals = []
            for e in range(8):
                bs, sub = cm(4 * tt + 2 * (e >> 2) + ((e & 3) >> 1), e & 1); vals.append(bs * 2 + sub)
            table(a, WA + tt + 2 * ci, T0 + 4, vals, 8, t, SPAIR)
        if len(cmaps) > 1: a(f"s_cmp_ge_u32 s{SW}, 4\ns_cselect_b64 vcc, -1, 0\nv_cndmask_b32 v{WA+tt}, v{WA+tt}, v{WA+tt+2}, vcc")
        a(f"v_xor_b32 v{WA+tt}, v{WA+tt}, v{r}\nv_lshl_add_u32 v{WA+tt}, v{WA+tt}, 3, v{T0+5}")
    a(f"v_and_b32 v{t}, 31, v{LN}\nv_lshlrev_b32 v{t}, 7, v{t}\nv_lshrrev_b32 v{t2}, 1, v{LN}\nv_and_b32 v{t2}, 7, v{t2}\nv_lshrrev_b32 v{r}, 5, v{LN}\nv_xor_b32 v{t2}, v{t2}, v{r}")
    a(f"v_lshl_add_u32 v{t}, v{t2}, 4, v{t}\ns_and_b32 s{ST}, s{SW}, 3\ns_lshl_b32 s{ST}, s{ST}, 12\ns_add_u32 s{ST}, s{ST}, 16384\nv_add_u32 v{XA}, s{ST}, v{t}")
    for ks in range(1, 4): a(f"v_xor_b32 v{XA+ks}, {32 * ks}, v{XA}")
    def reads(n):
        s, ks = divmod(n, 4); b = (s % 2) * 32768; p = n & 1
        a(f"ds_read_b128 {vr(XB + 4 * p, 4)}, v{XA+ks} offset:{b}")
        for tt in range(T):
            for q in range(2): a(f"ds_read_b64_tr_b16 {vr(AB + 16 * p + 4 * tt + 2 * q, 2)}, v{WA+tt} offset:{b + (16 * ks + 4 * q) * 256}")
    if wait:
        wait()
        for S in range(NS):
            for d in dma(S, 2): a(d)
        a(f"s_waitcnt vmcnt({nd // 2 * (NS - 1)})\ns_barrier")
    else: a(f"s_waitcnt vmcnt({nd * (NS - 1) + (pre.n if pre else 0)})\ns_barrier"); stamp(a, 1); pre.post()
    reads(0)
    R = 1 + 2 * T
    for n in range(40):
        s, ks = divmod(n, 4); p = n & 1
        def mf(tt): a(f"v_mfma_f32_32x32x16_bf16 {vr(16 * tt, 16)}, {vr(AB + 16 * p + 4 * tt, 4)}, {vr(XB + 4 * p, 4)}, {vr(16 * tt, 16) if n else 0}")
        a(f"s_waitcnt lgkmcnt({2 * (T - 1)})"); mf(0)
        if n == 39:
            for tt in range(1, T): a(f"s_waitcnt lgkmcnt({2 * (T - 1 - tt)})"); mf(tt)
        elif ks < 3:
            reads(n + 1)
            for tt in range(1, T): a(f"s_waitcnt lgkmcnt({2 * (T - 1 - tt) + R})"); mf(tt)
        else:
            np = pre.n if pre and s == 0 and pre.late else 0
            a(f"s_waitcnt vmcnt({nd * (min(s + NS - 1, 9) - s - 1) + np}) lgkmcnt(0)\ns_barrier")
            reads(n + 1)
            D = dma(s + NS) if s + NS <= 9 else []
            for tt in range(1, T):
                mf(tt)
                k = (len(D) + T - 2) // (T - 1)
                for d in D[(tt - 1) * k: tt * k]: a(d)
QKV_G = [(0, 0), (0, 2), (1, 0), (1, 2), (0, 4), (0, 6), (1, 4), (1, 6), (0, 8), (1, 8), (2, 0), (2, 4), (2, 2), (2, 8), None, (2, 6)]
def qkv_c(u, h):
    if u == 15: return 14, h
    part, ch = (h, u) if u < 10 else (2, u - 10 + 5 * h)
    return QKV_G.index((part, ch & ~1)), ch & 1
A_G = [(0, 0), (0, 2), (1, 0), (1, 2), (2, 0), (2, 2), (0, 4), (1, 4), (0, 6), (1, 6), (0, 8), (1, 8), (2, 6), (2, 8), (2, 3), (2, 5)]
def a_c(hs):
    def f(u, h):
        if u == 7 and h: return (7, 1) if hs == 0 else (10, 0)
        part, ch = (h, 5 * hs + u) if u < 5 else (2, 5 * hs + [[0, 1, 4], [2, 3]][h][u - 5])
        if (part, ch) == (2, 4): return 14, 1
        if (part, ch) == (2, 5): return 15, 0
        return A_G.index((part, ch & ~1)), ch & 1
    return f
O_G = [(0, 0), (0, 2), (0, 5), (0, 7), (0, 3), (0, 8)] + [None] * 10
def o_c(u, h):
    return [[(0, 0), (0, 1), (1, 0), (1, 1), (4, 1), (6, 0), (6, 1), (7, 0)], [(2, 0), (2, 1), (3, 0), (3, 1), (5, 1), (6, 0), (6, 1), (7, 0)]][h][u]
def poll(a, L, t, srdr, soff, off, want, lanes):
    a(f"s_mov_b64 exec, {(1 << lanes) - 1}\nv_lshlrev_b32 v{t}, 2, v{LN}\ns_mov_b32 s53, 0")
    a(f"{L}_p:\ns_add_u32 s53, s53, 1\ns_cmp_ge_u32 s53, 0x100000\ns_cbranch_scc1 {L}_e\nbuffer_load_dword v{t+1}, v{t}, {sr(srdr, 4)}, {soff} offen offset:{off} sc1")
    a(f"s_waitcnt vmcnt(0)\nv_cmp_ne_u32 vcc, {want}, v{t+1}\ns_cbranch_vccnz {L}_p\n{L}_e:\ns_mov_b64 exec, -1")
def flinit(a, t):
    a(f"s_lshl_b32 s83, s2, 9\ns_add_u32 s83, s83, {FLOFF}\nv_lshlrev_b32 v{t}, 3, v{LN}\nv_mov_b32 v{t+2}, 0\nv_mov_b32 v{t+3}, 0")
    a(f"s_cmp_lg_u32 s{SW}, 0\ns_cbranch_scc1 fi{t}\nbuffer_store_dwordx2 {vr(t + 2, 2)}, v{t}, s[16:19], s83 offen sc1\nfi{t}:")
def flready(a, role, L):
    a(f"s_cmp_lg_u32 s{SW}, 0\ns_cbranch_scc1 {L}\nv_mov_b32 v122, 0\nv_mov_b32 v123, 1\ns_mov_b64 exec, 1\nbuffer_atomic_add v123, v122, s[44:47], 0 offen offset:{128 * role} sc1\ns_mov_b64 exec, -1\n{L}:")
def initld(a, role, d): a(f"v_mov_b32 v{d}, 0\nbuffer_load_dword v{d}, v{d}, s[44:47], 0 offen offset:{128 * role} sc1")
def signal(a, sync, role, L, t, chk=None, extra=None):
    a(f"s_waitcnt vmcnt(0)\ns_barrier\ns_cmp_lg_u32 s{SW}, 0\ns_cbranch_scc1 {L}_s")
    if chk is not None:
        a(f"v_readfirstlane_b32 s52, v{chk}\ns_cmpk_eq_u32 s52, 256\ns_cbranch_scc1 {L}_c"); poll(a, L + "i", t, 44, 0, 128 * role, "0x100", 1); a(f"{L}_c:")
    if sync == 0: a(f"s_and_b32 s3, s2, 0x11b\nv_lshrrev_b32 v{t}, 3, v{LN}\nv_and_b32 v{t+1}, 7, v{LN}\nv_lshlrev_b32 v{t}, 2, v{t}\nv_lshl_or_b32 v{t}, v{t+1}, 5, v{t}\ns_lshl_b32 s52, s32, 2")
    else: a(f"s_lshr_b32 s3, s32, 1\ns_and_b32 s52, s32, 1\ns_lshl_b32 s52, s52, 3\ns_or_b32 s3, s3, s52\ns_or_b32 s3, s3, {256 * role}\nv_lshlrev_b32 v{t}, 4, v{LN}\ns_lshl_b32 s52, s33, 2")
    a(f"v_or_b32 v{t}, s3, v{t}\nv_lshlrev_b32 v{t}, 9, v{t}\nv_mov_b32 v{t+1}, 1\ns_add_u32 s52, s52, {FLOFF}\ns_mov_b64 exec, 0xffff")
    a(f"buffer_store_dword v{t+1}, v{t}, s[16:19], s52 offen offset:{128 * sync} sc1")
    if extra: extra()
    a(f"s_mov_b64 exec, -1\n{L}_s:")
def waitfor(a, sync, L, t):
    a(f"s_cmp_lg_u32 s{SW}, 0\ns_cbranch_scc1 {L}_go"); poll(a, L, t, 16, "s83", 128 * sync, 1, 16); a(f"{L}_go:\ns_barrier")
def ids(a):
    a("s_and_b32 s3, s2, 3\ns_lshl_b32 s3, s3, 2\ns_bfe_u32 s33, s2, 0x20003\ns_add_u32 s33, s33, s3")
    a("s_bfe_u32 s3, s2, 0x10002\ns_lshl_b32 s3, s3, 3\ns_bfe_u32 s32, s2, 0x30005\ns_add_u32 s32, s32, s3")
    a("s_and_b32 s3, s2, 7\ns_lshl_b32 s3, s3, 1\ns_bfe_u32 s54, s2, 0x10003\ns_add_u32 s54, s54, s3\ns_bfe_u32 s55, s2, 0x40004")
    a(f"s_mul_i32 s{SWROW}, s33, 80\ns_mul_i32 s{SXROW}, s32, {128 * 1280}")
def l2pre(a, NW, t, D):
    n = 0
    a(f"s_lshl_b32 s3, s{SW}, 6\nv_add_u32 v{t}, s3, v{LN}\ns_bfe_u32 s34, s2, 0x20003\ns_mul_i32 s35, s34, {32 * 1280}\ns_mul_i32 s3, s32, {128 * 1280}\ns_add_u32 s35, s35, s3")
    for i in range(0, 320, 64 * NW):
        a(f"v_add_u32 v{t+1}, {i}, v{t}\nv_min_u32 v{t+1}, 319, v{t+1}\nv_lshlrev_b32 v{t+1}, 7, v{t+1}\nbuffer_load_dword v{D+n}, v{t+1}, s[12:15], s35 offen"); n += 1
    a(f"s_bfe_u32 s3, s2, 0x30005\ns_lshl_b32 s3, s3, 2\ns_add_u32 s3, s3, s34\ns_mul_i32 s35, s3, {20 * 3840}\ns_and_b32 s3, s2, 3\ns_mul_i32 s3, s3, 320\ns_add_u32 s35, s35, s3")
    a(f"v_min_u32 v{t}, 239, v{t}\nv_lshrrev_b32 v{t+1}, 2, v{t}\nv_and_b32 v{t}, 3, v{t}\nv_mul_u32_u24 v{t+1}, 1280, v{t+1}\nv_mul_u32_u24 v{t}, 104, v{t}\nv_add_u32 v{t}, v{t}, v{t+1}")
    a(f"buffer_load_dword v{D+n}, v{t}, s[8:11], s35 offen"); n += 1
    return n
def head(a, n, L):
    a(f"s_cmp_ge_u32 s2, {n}\ns_cbranch_scc1 {L}_end\nv_lshrrev_b32 v1, 6, v0\nv_and_b32 v{LN}, 63, v0\nv_readfirstlane_b32 s{SW}, v1"); stamp(a, 0)
MF = "v_mfma_f32_32x32x16_bf16"
CH = 24576
def attn(a):
    S = [0, 16]; O, P, K0, K1, V0, V1, Q0, Q1 = 32, 48, 56, 60, 64, 68, 72, 76
    KA0, KA1, VA, DV, KV0, KV1, M, t = 80, 81, 82, 83, 84, 85, 86, 88
    a("s_load_dwordx4 s[4:7], s[0:1], 0\ns_load_dwordx2 s[36:37], s[0:1], 16\ns_load_dwordx2 s[30:31], s[0:1], 56\ns_load_dwordx4 s[48:51], s[0:1], 64\ns_setprio 2")
    ids(a); a("s_waitcnt lgkmcnt(0)")
    srd(a, 8, 6, 640 * 3840); srd(a, 12, 4, 2048 * 1280); srd(a, 16, 50, WSEND); srd(a, 44, 48, 256); srd(a, 56, 36, 640 * 1280); srd(a, 60, 30, 2048 * 2560)
    flinit(a, 0)
    def pre(): pre.n = l2pre(a, 8, T0, 124)
    pre.late = True; pre.post = lambda: flready(a, 0, "a_fr")
    gemm(a, 2, 2, 8, A_G, [a_c(0), a_c(1)], 3840, 8, 12, pre); stamp(a, 2)
    initld(a, 0, 124)
    a(f"s_lshr_b32 s39, s{SW}, 2\ns_lshl_b32 s3, s33, 1\ns_add_u32 s3, s3, s39\ns_mul_i32 s38, s3, {HSZ}\ns_mov_b32 s37, 0")
    a(f"v_and_b32 v{t}, 31, v{LN}\nv_lshrrev_b32 v{t+1}, 5, v{LN}\nv_mul_u32_u24 v{t}, 48, v{t}\nv_lshl_add_u32 v{KV0}, v{t+1}, 4, v{t}\nv_add_u32 v{KV1}, 32, v{t}")
    a(f"v_cmp_gt_u32 vcc, 32, v{LN}\nv_mov_b32 v{t+2}, {f2u(LOG2E / 20 ** 0.5)}\nv_cndmask_b32 v{t+2}, 1.0, v{t+2}, vcc")
    a(f"v_mov_b32 v{t+3}, {VOFF - KOFF}\nv_cndmask_b32 v{t+3}, 0, v{t+3}, vcc\nv_add_u32 v{t+3}, v{t+3}, v{KV1}")
    a(f"s_lshl_b32 s3, s32, 2\ns_and_b32 s34, s{SW}, 3\ns_add_u32 s43, s3, s34\ns_mul_i32 s3, s43, 1536\ns_add_u32 s34, s3, s38\ns_add_u32 s35, s34, {VOFF}\ns_add_u32 s34, s34, {KOFF}\ns_mul_i32 s31, s43, 40960")
    for i in range(4): a(f"v_cvt_pk_bf16_f32 v{36+i}, v{20+2*i}, v{21+2*i}")
    a(f"buffer_store_dwordx4 v[36:39], v{KV0}, s[16:19], s35 offen sc1")
    for i in range(20): a(f"v_mul_f32 v{i}, v{t+2}, v{i}")
    for i in range(4): a(f"v_cvt_pk_bf16_f32 v{Q0+i}, v{2*i}, v{2*i+1}\nv_cvt_pk_bf16_f32 v{32+i}, v{8+2*i}, v{9+2*i}")
    for i in range(4): a(f"v_permlane32_swap_b32 v{Q0+i}, v{32+i}")
    a(f"buffer_store_dwordx4 v[32:35], v{KV0}, s[16:19], s34 offen sc1")
    a(f"v_cvt_pk_bf16_f32 v44, v16, v17\nv_cvt_pk_bf16_f32 v45, v18, v19\nv_cvt_pk_bf16_f32 v46, v28, v29\nv_cvt_pk_bf16_f32 v47, v30, v31")
    a(f"v_cndmask_b32 v40, v44, v46, vcc\nv_cndmask_b32 v41, v45, v47, vcc\nv_mov_b32 v42, 0x3f803f80\nv_mov_b32 v43, 0x3f80")
    a(f"buffer_store_dwordx4 v[40:43], v{t+3}, s[16:19], s34 offen sc1\nv_cndmask_b32 v{Q1}, 0, v44, vcc\nv_cndmask_b32 v{Q1+1}, 0, v45, vcc")
    a(f"v_mov_b32 v{t}, 0\nv_mov_b32 v{t+1}, {3 * CH}\nds_write_b32 v{t+1}, v{t}\nv_lshlrev_b32 v{DV}, 4, v{LN}")
    a(f"s_bfe_u32 s40, s{SW}, 0x10001\ns_mul_i32 s40, s40, {VOFF - KOFF}\ns_and_b32 s3, s{SW}, 1\ns_mul_i32 s3, s3, 3072\ns_add_u32 s40, s40, s3\ns_add_u32 s40, s40, s38\ns_add_u32 s40, s40, {KOFF}")
    a(f"s_mul_i32 s41, s{SW}, 3072\ns_mul_i32 s30, s39, 12288")
    signal(a, 0, 0, "aq", t, 124); stamp(a, 3); waitfor(a, 0, "aq", t); stamp(a, 4); a("s_setprio 0")
    def dma():
        a("s_mov_b32 m0, s35")
        for j in range(3): a(f"buffer_load_dwordx4 v{DV}, s[16:19], s34 offen offset:{1024 * j} lds")
    a("at_start:\ns_mov_b32 s34, s40\ns_mov_b32 s35, s41"); dma()
    a(f"s_add_u32 s42, s38, {KOFF}\ns_lshl_b32 s43, s37, 6\ns_max_u32 s43, s43, 1\nv_mov_b32 v{M}, 0xff800000\nv_mov_b32 v{Q1+2}, 0\nv_mov_b32 v{Q1+3}, 0")
    a(f"at_max:\nbuffer_load_dwordx4 {vr(K0, 4)}, v{KV0}, s[16:19], s42 offen\nbuffer_load_dwordx4 {vr(K1, 4)}, v{KV1}, s[16:19], s42 offen")
    a(f"s_add_u32 s42, s42, 1536\ns_sub_u32 s43, s43, 1\ns_waitcnt vmcnt(0)")
    a(f"{MF} {vr(0, 16)}, {vr(K0, 4)}, {vr(Q0, 4)}, 0\n{MF} {vr(0, 16)}, {vr(K1, 4)}, {vr(Q1, 4)}, {vr(0, 16)}")
    for i in range(8): a(f"v_max3_f32 v{M}, v{M}, v{2*i}, v{2*i+1}")
    a("s_cmp_lg_u32 s43, 0\ns_cbranch_scc1 at_max\ns_barrier")
    a(f"s_add_u32 s34, s34, {CH // 4}\ns_add_u32 s35, s35, {CH}"); dma()
    a(f"v_add_u32 v{KA0}, s30, v{KV0}\nv_add_u32 v{KA1}, s30, v{KV1}\nv_mov_b32 v{t}, v{M}\nv_permlane32_swap_b32 v{M}, v{t}\nv_max_f32 v{M}, v{M}, v{t}")
    a(f"v_xor_b32 v{M}, 0x80000000, v{M}\nv_and_b32 v{t}, 0xffff0000, v{M}\nv_sub_f32 v{M}, v{M}, v{t}\nv_and_b32 v{t+1}, 0xffff0000, v{M}\nv_sub_f32 v{M}, v{M}, v{t+1}")
    a(f"v_lshrrev_b32 v{t}, 16, v{t}\nv_or_b32 v{t}, v{t}, v{t+1}\nv_lshrrev_b32 v{M}, 16, v{M}\nv_cmp_gt_u32 vcc, 32, v{LN}\nv_cndmask_b32 v{Q1+2}, 0, v{t}, vcc\nv_cndmask_b32 v{Q1+3}, 0, v{M}, vcc")
    a(f"ds_read_b128 {vr(K0, 4)}, v{KA0}\nds_read_b128 {vr(K1, 4)}, v{KA1}")
    a(f"v_lshrrev_b32 v{t}, 2, v{LN}\nv_and_b32 v{t+1}, 3, v{t}\nv_and_b32 v{t}, 4, v{t}\nv_and_b32 v{t+2}, 3, v{LN}\nv_or_b32 v{t+4}, v{t}, v{t+2}")
    a(f"v_lshrrev_b32 v{t}, 5, v{LN}\nv_lshl_add_u32 v{t+1}, v{t}, 2, v{t+1}\nv_mul_u32_u24 v{t+5}, 48, v{t+1}")
    a(f"s_lshl_b32 s3, s39, 3\nv_add_u32 v{t+4}, s3, v{t+4}")
    table(a, VA, t + 4, [0, 2, 1, 3, 4, 5, 5, 5, 1, 3, 2, 4, 0, 5, 5, 5], 4, t + 2, SPAIR)
    a(f"v_lshl_add_u32 v{VA}, v{VA}, 3, v{t+5}\ns_add_u32 s3, s30, {CH // 4}\nv_add_u32 v{VA}, s3, v{VA}")
    for i in range(16): a(f"v_mov_b32 v{O+i}, 0")
    for i in range(4): a(f"v_mov_b32 v{P+4+i}, 0\nv_mov_b32 v{V1+i}, 0")
    a(f"s_waitcnt lgkmcnt(0)\n{MF} {vr(0, 16)}, {vr(K0, 4)}, {vr(Q0, 4)}, 0\n{MF} {vr(0, 16)}, {vr(K1, 4)}, {vr(Q1, 4)}, {vr(0, 16)}")
    a(f"ds_read_b128 {vr(K0, 4)}, v{KA0} offset:1536\nds_read_b128 {vr(K1, 4)}, v{KA1} offset:1536")
    a(f"s_movk_i32 s82, {CH}\ns_mov_b32 s36, 0\ns_mov_b32 s80, 0\ns_mov_b32 s81, 0\ns_waitcnt lgkmcnt(0)\nat_loop:")
    def ex(c, q):
        for i in range(4): a(f"v_exp_f32 v{c+4*q+i}, v{c+4*q+i}")
        a(f"v_cvt_pk_bf16_f32 v{P+2*q}, v{c+4*q}, v{c+4*q+1}\nv_cvt_pk_bf16_f32 v{P+2*q+1}, v{c+4*q+2}, v{c+4*q+3}")
    def vrd(d, u, s):
        for p in range(2): a(f"ds_read_b64_tr_b16 {vr(d + 2 * p, 2)}, v{VA} offset:{u * 1536 + (16 * s + 8 * p) * 48}")
    W = "s_waitcnt lgkmcnt(3)\n"
    for u in range(4):
        c, n = S[u & 1], S[1 - (u & 1)]; ko = ((u + 2) & 3) * 1536
        if u == 0: a(f"v_add_u32 v{VA}, s81, v{VA}")
        a(W + f"{MF} {vr(n, 16)}, {vr(K0, 4)}, {vr(Q0, 4)}, 0"); vrd(V0, u, 0)
        if u == 2:
            a(f"s_add_u32 s80, s80, 1\ns_cmp_eq_u32 s80, 3\ns_cselect_b32 s81, {-2 * CH}, s82\ns_cselect_b32 s80, 0, s80\nv_add_u32 v{KA0}, s81, v{KA0}\nv_add_u32 v{KA1}, s81, v{KA1}")
            a(f"s_add_u32 s34, s34, {CH // 4}\ns_add_u32 s35, s35, {CH}\ns_cmp_eq_u32 s80, 2\ns_cselect_b32 s35, s41, s35")
        ex(c, 0)
        if u == 2:
            a("s_waitcnt vmcnt(0)\ns_barrier\ns_cmp_ge_u32 s36, 14\ns_cbranch_scc1 at_nodma"); dma(); a("at_nodma:")
        a(W + f"{MF} {vr(O, 16)}, {vr(V1, 4)}, {vr(P + 4, 4)}, {vr(O, 16)}\nds_read_b128 {vr(K0, 4)}, v{KA0} offset:{ko}"); ex(c, 1)
        a(W + f"{MF} {vr(n, 16)}, {vr(K1, 4)}, {vr(Q1, 4)}, {vr(n, 16)}"); vrd(V1, u, 1); ex(c, 2)
        a(W + f"{MF} {vr(O, 16)}, {vr(V0, 4)}, {vr(P, 4)}, {vr(O, 16)}\nds_read_b128 {vr(K1, 4)}, v{KA1} offset:{ko}"); ex(c, 3)
    a("s_add_u32 s36, s36, 1\ns_cmp_lt_u32 s36, 16\ns_cbranch_scc1 at_loop"); stamp(a, 5)
    a(f"s_waitcnt lgkmcnt(0)\n{MF} {vr(O, 16)}, {vr(V1, 4)}, {vr(P + 4, 4)}, {vr(O, 16)}")
    a(f"v_and_b32 v{t+1}, 31, v{LN}\nv_lshlrev_b32 v{t}, 4, v{LN}\nv_lshlrev_b32 v{t+1}, 4, v{t+1}\nv_lshrrev_b32 v{t+2}, 5, v{LN}\nv_lshl_add_u32 v{t+1}, v{t+2}, 30, v{t+1}")
    a(f"s_mul_i32 s3, s33, 2560\ns_add_u32 s42, s3, s31\ns_add_u32 s42, s42, {OAOFF}\ns_lshl_b32 s3, s39, 3\ns_add_u32 s43, s42, s3\ns_mul_i32 s3, s39, 1536\ns_add_u32 s42, s42, s3")
    a(f"v_mov_b32 v{t+2}, {f2u(2.0 ** 40)}\nv_mov_b32 v{t+3}, {3 * CH}\nv_mov_b32 v{t+4}, 1")
    a(f"v_cmp_nlt_f32 vcc, v{O+12}, v{t+2}\nv_rcp_f32 v{M}, v{O+12}\ns_cbranch_vccz at_ok\nds_write_b32 v{t+3}, v{t+4}\nat_ok:")
    for i in range(6): a(f"v_mul_f32 v{O+2*i}, v{M}, v{O+2*i}\nv_mul_f32 v{O+2*i+1}, v{M}, v{O+2*i+1}\nv_cvt_pk_bf16_f32 v{P+i}, v{O+2*i}, v{O+2*i+1}")
    a(f"buffer_store_dwordx4 {vr(P, 4)}, v{t}, s[16:19], s42 offen sc1\nbuffer_store_dwordx2 {vr(P + 4, 2)}, v{t+1}, s[16:19], s43 offen offset:1024 sc1")
    a(f"s_cmp_lg_u32 s37, 0\ns_cbranch_scc1 at_done\ns_waitcnt lgkmcnt(0)\ns_barrier\nds_read_b32 v{t}, v{t+3}\ns_waitcnt lgkmcnt(0)\nv_readfirstlane_b32 s37, v{t}")
    a("s_cmp_lg_u32 s37, 0\ns_cbranch_scc1 at_start\nat_done:\ns_setprio 2")
    signal(a, 1, 0, "ao", t)
    a(f"s_mul_i32 s34, s55, 80\ns_lshl_b32 s35, s{SW}, 10\ns_lshl_b32 s3, s{SW}, 6\nv_add_u32 v0, s3, v{LN}\ns_mov_b32 s36, 52429")
    for i in range(7):
        if i == 6: a(f"s_cmp_ge_u32 s{SW}, 2\ns_cbranch_scc1 f_nod")
        a(f"v_mul_u32_u24 v1, s36, v0\nv_lshrrev_b32 v1, 18, v1\nv_mul_u32_u24 v1, 1200, v1\nv_lshl_add_u32 v{2+i}, v0, 4, v1\ns_add_u32 m0, s35, {8192 * i}\nv_add_u32 v0, 512, v0")
        a(f"buffer_load_dwordx4 v{2+i}, s[56:59], s34 offen lds")
    L, A0, A1, XV = 127, 124, 125, 126
    a(f"f_nod:\nv_mov_b32 v{L}, v{LN}\nv_bfe_u32 v0, v{L}, 2, 2\nv_lshrrev_b32 v1, 5, v{L}\nv_lshl_add_u32 v0, v1, 3, v0\nv_mul_u32_u24 v0, 80, v0\ns_mul_i32 s3, s39, 25600\nv_add_u32 v0, s3, v0")
    a(f"v_and_b32 v1, 1, v{L}\nv_mul_u32_u24 v1, 40, v1\nv_add_u32 v0, v0, v1\nv_add_u32 v{A1}, 32, v0\nv_bfe_u32 v1, v{L}, 1, 1\nv_bfe_u32 v2, v{L}, 4, 1\nv_lshl_add_u32 v1, v2, 1, v1\nv_lshl_add_u32 v{A0}, v1, 3, v0")
    a(f"v_lshlrev_b32 v{XV}, 4, v{L}\ns_lshl_b32 s3, s54, 2\ns_and_b32 s36, s{SW}, 3\ns_add_u32 s43, s3, s36\ns_mul_i32 s34, s43, 40960\ns_mul_i32 s3, s39, 20480\ns_add_u32 s34, s34, s3\ns_add_u32 s34, s34, {OAOFF}")
    a("s_waitcnt vmcnt(0)"); waitfor(a, 1, "ao", 0); stamp(a, 6)
    for k in range(20):
        a(f"buffer_load_dwordx4 {vr(32 + 4 * k, 4)}, v{XV}, s[16:19], s34 offen offset:{(k & 3) * 1024} sc1")
        if k & 3 == 3: a("s_add_u32 s34, s34, 4096")
    def rd(n):
        k, T = divmod(n, 2)
        for p in range(2): a(f"ds_read_b64_tr_b16 {vr(112 + 4 * (n % 3) + 2 * p, 2)}, v{A1 if T else A0} offset:{(16 * k + 4 * p) * 80}")
    rd(0); rd(1)
    for n in range(40):
        k, T = divmod(n, 2)
        if n + 2 < 40: rd(n + 2)
        a(f"s_waitcnt vmcnt({19 - k}) lgkmcnt({2 * min(2, 39 - n)})\n{MF} {vr(16 * T, 16)}, {vr(112 + 4 * (n % 3), 4)}, {vr(32 + 4 * k, 4)}, {vr(16 * T, 16) if k else 0}")
    a(f"s_mul_i32 s3, s36, 5120\ns_add_u32 s3, s3, 51200\nv_add_u32 v{XV}, s3, v{XV}\ns_cmp_eq_u32 s39, 0\ns_cbranch_scc1 f_lo")
    for q in range(5): a(f"ds_write_b128 v{XV}, {vr(4 * q, 4)} offset:{1024 * q}")
    a("s_waitcnt lgkmcnt(0)\ns_barrier\ns_endpgm\nf_lo:\ns_barrier")
    for q in range(5): a(f"ds_read_b128 {vr(32 + 4 * q, 4)}, v{XV} offset:{1024 * q}")
    outst(a, L, 43, 0, red=True)
    tsout(a, 0, 8, "at_ts"); a("s_endpgm")
def outst(a, L, tile, col0, red):
    a(f"v_and_b32 v60, 31, v{L}\nv_lshrrev_b32 v61, 5, v{L}\nv_mul_u32_u24 v60, 2560, v60\nv_mad_u32_u24 v60, v61, 40, v60\ns_mul_i32 s3, s{tile}, {32 * 2560}\ns_mul_i32 s34, s55, 80\ns_add_u32 s3, s3, s34\ns_add_u32 s3, s3, {col0}")
    for i in range(10):
        if red: a(f"s_waitcnt lgkmcnt({4 - i // 2})\nv_add_f32 v{2*i}, v{2*i}, v{32+2*i}\nv_add_f32 v{2*i+1}, v{2*i+1}, v{33+2*i}")
        a(f"v_cvt_pk_bf16_f32 v{64+i}, v{2*i}, v{2*i+1}")
    a("buffer_store_dwordx4 v[64:67], v60, s[60:63], s3 offen\nbuffer_store_dwordx4 v[68:71], v60, s[60:63], s3 offen offset:16\nbuffer_store_dwordx2 v[72:73], v60, s[60:63], s3 offen offset:32")
    if TS: a("s_waitcnt vmcnt(0)")
WPH, ZR, PHK, VP, KVB = 65536, 67584, 0, 20480, 32768
def brole(a):
    a(f"s_cmp_ge_u32 s{SW}, {0 if 'nob' in X else 4}\ns_cbranch_scc1 k2_end")
    a("s_load_dwordx4 s[4:7], s[0:1], 24\ns_load_dwordx4 s[36:39], s[0:1], 40\ns_load_dwordx2 s[30:31], s[0:1], 56\ns_load_dwordx4 s[48:51], s[0:1], 64\ns_setprio 1")
    ids(a); a("s_waitcnt lgkmcnt(0)")
    srd(a, 8, 6, 640 * 3840); srd(a, 12, 4, 2048 * 1280); srd(a, 16, 50, WSEND); srd(a, 40, 36, 25600); srd(a, 44, 48, 256); srd(a, 56, 38, 640 * 1280); srd(a, 60, 30, 2048 * 2560)
    t = T0; flinit(a, 4)
    def pre():
        a(f"s_and_b32 s3, s{SW}, 1\ns_lshl_b32 s3, s3, 10\ns_add_u32 m0, s3, {WPH}\ns_mul_i32 s34, s33, 1600\ns_add_u32 s34, s34, s3\nv_lshlrev_b32 v{t}, 4, v{LN}")
        a(f"buffer_load_dwordx4 v{t}, s[40:43], s34 offen lds")
        a(f"s_lshl_b32 s3, s{SW}, 9\ns_add_u32 s3, s3, {ZR}\nv_lshl_add_u32 v{t+1}, v{LN}, 3, s3\nv_mov_b32 v{t+2}, 0\nv_mov_b32 v{t+3}, 0\nds_write_b64 v{t+1}, {vr(t + 2, 2)}")
        pre.n = 1 + l2pre(a, 4, T0, 124)
    pre.late = True; pre.post = lambda: flready(a, 1, "b_fr")
    gemm(a, 4, 2, 4, QKV_G, [qkv_c], 3840, 8, 12, pre); stamp(a, 2)
    H, G1, R, C = 104, 105, 106, 107
    a(f"v_lshrrev_b32 v{H}, 5, v{LN}\nv_bfe_u32 v{G1}, v{LN}, 4, 1\nv_bfe_u32 v{R}, v{LN}, 2, 2\nv_and_b32 v{C}, 3, v{LN}")
    a(f"v_and_b32 v{t}, 1, v{C}\nv_cmp_eq_u32 vcc, v{t}, v{H}\nv_lshrrev_b32 v{t}, 1, v{C}\nv_lshl_add_u32 v{t}, v{G1}, 1, v{t}\nv_mul_u32_u24 v{t+1}, 40, v{R}")
    a(f"v_lshl_add_u32 v{t+2}, v{t}, 3, v{t+1}\nv_add_u32 v{t+2}, {WPH}, v{t+2}\nv_mov_b32 v{t+3}, {ZR}\nv_cndmask_b32 v108, v{t+3}, v{t+2}, vcc")
    a(f"v_cmp_eq_u32 s[34:35], 0, v{t}\ns_and_b64 vcc, vcc, s[34:35]\nv_add_u32 v{t+2}, 32, v{t+2}\nv_cndmask_b32 v109, v{t+3}, v{t+2}, vcc")
    for n in range(3):
        p = 64 + 12 * n
        for i in range(10): a(f"v_cvt_pk_bf16_f32 v{p+i}, v{20*n+2*i}, v{20*n+2*i+1}")
        a(f"v_mov_b32 v{p+10}, {0x3f80 if n == 2 else 0}\nv_mov_b32 v{p+11}, 0")
    a(f"v_and_b32 v110, 31, v{LN}\ns_lshl_b32 s3, s{SW}, 5\nv_add_u32 v110, s3, v110")
    a(f"v_mul_u32_u24 v{t}, 48, v110\nv_mul_u32_u24 v{t+1}, 6144, v{H}\ns_movk_i32 s3, {VP}\nv_add3_u32 v{t}, v{t}, v{t+1}, s3\ns_barrier")
    for q in range(3): a(f"ds_write_b128 v{t}, {vr(88 + 4 * q, 4)} offset:{16 * q}")
    for n in range(2):
        for T in range(2):
            for s in range(3):
                A = 88 + 4 * ((2 * n + T + s) % 3)
                if T == 0 and s == 0 and n == 0: a("s_waitcnt lgkmcnt(0)")
                a(f"ds_read_b64_tr_b16 {vr(A, 2)}, v{108+T} offset:{800 * n + 320 * s}")
                if s < 2: a(f"ds_read_b64_tr_b16 {vr(A + 2, 2)}, v{108+T} offset:{800 * n + 320 * s + 160}")
                else: a(f"v_mov_b32 v{A+2}, 0\nv_mov_b32 v{A+3}, 0")
                d = 32 * n + 16 * T
                a(f"s_waitcnt lgkmcnt(0)\n{MF} {vr(d, 16)}, {vr(A, 4)}, {vr(64 + 12 * n + 4 * s, 4)}, {vr(d, 16) if s else 0}")
    MX, MN, SP, SN = t, t + 1, t + 2, t + 3
    a(f"s_mov_b32 s3, {f2u(LOG2E)}")
    for n in range(2):
        x = 32 * n; e = 32 * (1 - n) + 20 if n == 0 else 0; Pn = 64 + 20 * n
        E = [120 + i if i < 8 else x + 20 + i - 8 for i in range(20)]
        a(f"v_max3_f32 v{MX}, v{x}, v{x+1}, v{x+2}\nv_min3_f32 v{MN}, v{x}, v{x+1}, v{x+2}")
        for i in range(3, 19, 2): a(f"v_max3_f32 v{MX}, v{MX}, v{x+i}, v{x+i+1}\nv_min3_f32 v{MN}, v{MN}, v{x+i}, v{x+i+1}")
        a(f"v_max_f32 v{MX}, v{MX}, v{x+19}\nv_min_f32 v{MN}, v{MN}, v{x+19}\nv_mul_f32 v{MX}, s3, v{MX}\nv_mul_f32 v{MN}, s3, v{MN}")
        for i in range(20): a(f"v_fma_f32 v{E[i]}, -v{x+i}, s3, v{MN}\nv_fma_f32 v{x+i}, v{x+i}, s3, -v{MX}")
        for i in range(20): a(f"v_exp_f32 v{E[i]}, v{E[i]}\nv_exp_f32 v{x+i}, v{x+i}")
        a(f"v_add_f32 v{SP}, v{x}, v{x+1}\nv_add_f32 v{SN}, v{E[0]}, v{E[1]}")
        for i in range(2, 20): a(f"v_add_f32 v{SP}, v{SP}, v{x+i}\nv_add_f32 v{SN}, v{SN}, v{E[i]}")
        a(f"v_rcp_f32 v{SP}, v{SP}\nv_rcp_f32 v{SN}, v{SN}")
        for i in range(20): a(f"v_mul_f32 v{x+i}, v{SP}, v{x+i}\nv_mul_f32 v{E[i]}, v{SN}, v{E[i]}")
        for i in range(10): a(f"v_cvt_pk_bf16_f32 v{Pn+i}, v{x+2*i}, v{x+2*i+1}\nv_cvt_pk_bf16_f32 v{Pn+10+i}, v{E[2*i]}, v{E[2*i+1]}")
    for i in range(20): a(f"v_permlane32_swap_b32 v{64+i}, v{84+i}")
    a(f"v_mul_u32_u24 v{t}, 80, v110\nv_mul_u32_u24 v{t+1}, 10240, v{H}\nv_add_u32 v{t}, v{t}, v{t+1}")
    for q in range(5): a(f"ds_write_b128 v{t}, {vr(84 + 4 * q, 4)} offset:{PHK + 16 * q}")
    initld(a, 1, 124)
    a(f"s_lshr_b32 s34, s{SW}, 1\ns_and_b32 s35, s{SW}, 1\nv_lshl_add_u32 v{t}, v{H}, 3, v{R}\nv_lshl_add_u32 v{t+1}, v{G1}, 2, v{C}")
    a(f"s_lshl_b32 s3, s35, 3\nv_add_u32 v{t+2}, s3, v{t+1}\nv_min_u32 v{t+2}, 9, v{t+2}\nv_min_u32 v{t+1}, 5, v{t+1}")
    a(f"v_mul_u32_u24 v108, 80, v{t}\nv_lshl_add_u32 v108, v{t+2}, 3, v108\ns_mul_i32 s3, s34, 10240\nv_add_u32 v108, s3, v108")
    a(f"v_mul_u32_u24 v109, 48, v{t}\nv_lshl_add_u32 v109, v{t+1}, 3, v109\ns_mul_i32 s3, s34, 6144\ns_add_u32 s3, s3, {VP}\nv_add_u32 v109, s3, v109")
    a("s_waitcnt lgkmcnt(0)\ns_barrier")
    for hf in range(2):
        for s in range(4 * hf, 4 * hf + 4):
            for p in range(2):
                a(f"ds_read_b64_tr_b16 {vr(16 + 8 * (s & 3) + 2 * p, 2)}, v108 offset:{(16 * s + 4 * p) * 80}")
                a(f"ds_read_b64_tr_b16 {vr(20 + 8 * (s & 3) + 2 * p, 2)}, v109 offset:{(16 * s + 4 * p) * 48}")
            if s & 3 == 2: a("s_waitcnt lgkmcnt(0)")
        a("s_waitcnt lgkmcnt(0)")
        for s in range(4 * hf, 4 * hf + 4): a(f"{MF} {vr(0, 16)}, {vr(16 + 8 * (s & 3), 4)}, {vr(20 + 8 * (s & 3), 4)}, {vr(0, 16) if s else 0}")
    a(f"v_and_b32 v{t}, 31, v{LN}\nv_cmp_lt_u32 vcc, 20, v{t}\nv_mul_u32_u24 v{t}, 160, v{t}\nv_lshl_add_u32 v{t}, v{H}, 4, v{t}\nv_mov_b32 v{t+1}, 0x40000000\nv_cndmask_b32 v{t}, v{t}, v{t+1}, vcc")
    a(f"s_lshl_b32 s3, s33, 1\ns_add_u32 s3, s3, s34\ns_lshl_b32 s3, s3, 4\ns_add_u32 s3, s3, s32\ns_mul_i32 s3, s3, {KVP}\ns_lshl_b32 s38, s35, 7\ns_add_u32 s3, s3, s38\ns_add_u32 s3, s3, {KVOFF}")
    a(f"buffer_store_dwordx4 {vr(0, 4)}, v{t}, s[16:19], s3 offen sc1\ns_cmp_eq_u32 s35, 1\ns_cbranch_scc1 b_st")
    for j in range(1, 4): a(f"buffer_store_dwordx4 {vr(4 * j, 4)}, v{t}, s[16:19], s3 offen offset:{32 * j} sc1")
    a("b_st:"); signal(a, 0, 1, "bk", t, 124); stamp(a, 3); waitfor(a, 0, "bk", t); stamp(a, 4)
    a(f"s_lshl_b32 s3, s{SW}, 6\nv_add_u32 v111, s3, v{LN}\ns_mul_i32 s34, s33, {32 * KVP}\ns_add_u32 s34, s34, {KVOFF}")
    for rnd in range(2):
        a(f"v_cmp_le_u32 vcc, 210, v111\nv_cndmask_b32 v{t}, 0, 1, vcc\nv_mul_u32_u24 v{t+1}, {16 * KVP - 210 * 16}, v{t}\nv_lshl_add_u32 v{t+1}, v111, 4, v{t+1}")
        a(f"v_cmp_le_u32 vcc, 420, v111\nv_mov_b32 v{t+2}, 0x40000000\nv_cndmask_b32 v{t+1}, v{t+1}, v{t+2}, vcc\ns_mov_b32 s35, s34")
        for b in range(16): a(f"buffer_load_dwordx4 {vr(4 * b, 4)}, v{t+1}, s[16:19], s35 offen sc1\ns_add_u32 s35, s35, {KVP}")
        a(f"v_lshlrev_b32 v{t+3}, 3, v111\nv_add_u32 v{t+3}, {KVB}, v{t+3}\nv_add_u32 v111, 256, v111")
        for b in range(1, 16):
            a(f"s_waitcnt vmcnt({15 - b})")
            for i in range(4): a(f"v_add_f32 v{i}, v{i}, v{4*b+i}")
        a(f"v_cvt_pk_bf16_f32 v0, v0, v1\nv_cvt_pk_bf16_f32 v1, v2, v3\nds_write_b64 v{t+3}, v[0:1]")
    a(f"v_bfe_u32 v{t}, v{LN}, 2, 1\nv_cmp_eq_u32 vcc, v{t}, v{H}\nv_bfe_u32 v{t+1}, v{LN}, 3, 2\nv_lshl_add_u32 v{t+1}, v{t+1}, 2, v{C}")
    a(f"v_mul_u32_u24 v{t+2}, 80, v{t+1}\nv_mul_u32_u24 v{t}, 1680, v{H}\ns_mov_b32 s3, {KVB}\nv_add3_u32 v{t+2}, v{t+2}, v{t}, s3\nv_mov_b32 v{t+3}, {ZR}\nv_cndmask_b32 v108, v{t+3}, v{t+2}, vcc")
    a(f"v_cmp_ge_u32 s[34:35], 4, v{t+1}\ns_and_b64 vcc, vcc, s[34:35]\nv_add_u32 v{t+2}, 1280, v{t+2}\nv_cndmask_b32 v109, v{t+3}, v{t+2}, vcc\ns_waitcnt lgkmcnt(0)\ns_barrier")
    for T in range(2):
        for s in range(5): a(f"ds_read_b128 {vr(32 + 4 * s, 4)}, v{108+T} offset:{16 * s}")
        for s in range(5): a(f"s_waitcnt lgkmcnt({4 - s})\n{MF} {vr(16 * T, 16)}, {vr(32 + 4 * s, 4)}, {vr(64 + 4 * s, 4)}, {vr(16 * T, 16) if s else 0}")
    a(f"v_mul_u32_u24 v{t}, 1280, v110\nv_mad_u32_u24 v{t}, v{H}, 40, v{t}\ns_mul_i32 s3, s32, {128 * 1280}\ns_mul_i32 s34, s33, 80\ns_add_u32 s3, s3, s34\ns_add_u32 s3, s3, {OBOFF}")
    a(f"v_add_f32 v20, {f2u(1e-6)}, v20\nv_rcp_f32 v20, v20")
    for i in range(10): a(f"v_mul_f32 v{2*i}, v20, v{2*i}\nv_mul_f32 v{2*i+1}, v20, v{2*i+1}\nv_cvt_pk_bf16_f32 v{32+i}, v{2*i}, v{2*i+1}")
    a(f"buffer_store_dwordx4 v[32:35], v{t}, s[16:19], s3 offen sc1\nbuffer_store_dwordx4 v[36:39], v{t}, s[16:19], s3 offen offset:16 sc1\nbuffer_store_dwordx2 v[40:41], v{t}, s[16:19], s3 offen offset:32 sc1")
    signal(a, 1, 1, "bo", t); stamp(a, 5)
    a(f"s_setprio 0\ns_mul_i32 s{SWROW}, s55, 80\ns_mul_i32 s{SXROW}, s54, {128 * 1280}\ns_add_u32 s{SXROW}, s{SXROW}, {OBOFF}")
    def wt(): waitfor(a, 1, "bo", T0 + 6); stamp(a, 6)
    gemm(a, 2, 2, 4, O_G, [o_c], 1280, 56, 16, wait=wt)
    a(f"s_lshl_b32 s43, s54, 2\ns_add_u32 s43, s43, s{SW}")
    outst(a, LN, 43, 1280, red=False)
KN = "concat_heads__mha_block__linear_kernel_hedgehog__prompt_kernel"
def k2():
    a = Asm(); head(a, 512, "k2")
    a("s_cmp_ge_u32 s2, 256\ns_cbranch_scc1 k2_b")
    attn(a); a("k2_b:"); brole(a); tsout(a, 0, 8, "b_ts")
    a("k2_end:\ns_endpgm")
    return kernel(KN, a.finish(), 128)
if __name__ == "__main__":
    out = sys.argv[1] if len(sys.argv) > 1 else "concat_heads__mha_block__linear_kernel_hedgehog__prompt.s"
    ref = open("concat_heads__mha_block__linear_kernel_hedgehog__prompt.s.ref").read().split("\n")
    hdr = [l for l in ref if l.startswith(";") and "@launch" not in l and "Override" not in l and "grid=ceil" not in l][:11]
    hdr += ["; @launch grid=(512,1,1) block=(512,1,1) lds=73744", '.amdgcn_target "amdgcn-amd-amdhsa--gfx950"']
    open(out, "w").write("\n".join(hdr) + "\n" + k2())
```

```python
import sys, struct
sys.path.insert(0, "dev")
from asmlib import *
def f2u(x): return struct.unpack("<I", struct.pack("<f", x))[0]
LOG2E = 1.4426950408889634
HSZ = 2048 * 48
QOFF, KOFF, VOFF = 0, 32 * HSZ, 64 * HSZ
OAOFF = 96 * HSZ; OBOFF = OAOFF + 2048 * 1280
KVOFF = OBOFF + 2048 * 1280; KVP = 21 * 160
FLOFF = KVOFF + 32 * 16 * KVP
TSOFF = FLOFF + 512 * 512
WSEND = TSOFF + 512 * 64
import os
X = os.environ.get("X", "")
TS = int(os.environ.get("TS", "0"))
TSI = "s_memtime" if TS == 2 else "s_memrealtime"
def stamp(a, k):
    if TS: a(f"{TSI} s[{64+2*k}:{65+2*k}]\ns_waitcnt lgkmcnt(0)")
def tsout(a, kid, n, L):
    if not TS: return
    stamp(a, n - 1)
    if TS == 3:
        a(f"s_cmp_lg_u32 s{29}, 0\ns_cbranch_scc1 {L}\ns_and_b32 s3, s2, 255\ns_cmp_lg_u32 s3, 77\ns_cbranch_scc1 {L}\ns_lshr_b32 s3, s2, 8\ns_mul_i32 s3, s3, 28\nv_mov_b32 v0, 0")
        for k in range(1, n): a(f"s_sub_u32 s4, s{64+2*k}, s64\nv_mov_b32 v1, s4\nbuffer_store_dword v1, v0, s[44:47], s3 offen offset:{4*k}")
        a(f"{L}:"); return
    a(f"s_cmp_lg_u32 s{29}, 0\ns_cbranch_scc1 {L}\ns_load_dwordx2 s[84:85], s[0:1], 72\ns_waitcnt lgkmcnt(0)")
    srd(a, 84, 84, WSEND)
    a(f"s_lshl_b32 s3, s2, 6\ns_add_u32 s3, s3, {TSOFF}\nv_mov_b32 v0, 0")
    for k in range(n): a(f"v_mov_b32 v1, s{64+2*k}\nbuffer_store_dword v1, v0, s[84:87], s3 offen offset:{4*k}")
    a(f"s_getreg_b32 s4, hwreg(HW_REG_HW_ID)\ns_getreg_b32 s5, hwreg(HW_REG_XCC_ID)\ns_and_b32 s5, s5, 15\ns_lshl_b32 s5, s5, 16\ns_bfe_u32 s4, s4, 0x80008\ns_or_b32 s4, s4, s5\nv_mov_b32 v1, s4\nbuffer_store_dword v1, v0, s[84:87], s3 offen offset:60\n{L}:")
def srd(a, d, b, n, add=0):
    if add: a(f"s_add_u32 s{d}, s{b}, {add}\ns_addc_u32 s{d+1}, s{b+1}, 0")
    else: a(f"s_mov_b32 s{d}, s{b}\ns_mov_b32 s{d+1}, s{b+1}")
    a(f"s_mov_b32 s{d+2}, {n}\ns_mov_b32 s{d+3}, 0x20000")
def table(a, dst, idx, vals, bits, t, sp):
    x = 0
    for i, v in enumerate(vals): x |= v << (bits * i)
    a(f"s_mov_b32 s{sp}, {x & 0xffffffff}\ns_mov_b32 s{sp+1}, {x >> 32}")
    a(f"v_mul_u32_u24 v{dst}, {bits}, v{idx}\nv_lshrrev_b64 v[{t}:{t+1}], v{dst}, s[{sp}:{sp+1}]\nv_and_b32 v{dst}, {(1 << bits) - 1}, v{t}")
AB, XB, WA, XA, WV, XV0, XV1, LN, T0 = 64, 96, 104, 108, 112, 113, 114, 115, 116
SPAIR, SWROW, SXROW, SM0, ST, SW = 20, 24, 25, 26, 27, 29
def gemm(a, T, NS, NW, gmap, cmaps, wpitch, SRDW, SRDX, pre=None, wait=None):
    t, t2, r = T0, T0 + 2, T0 + 3; nd = 32 // NW
    a(f"v_lshrrev_b32 v{r}, 4, v{LN}\nv_lshlrev_b32 v{t2}, 2, v{r}\nv_xor_b32 v{t2}, v{t2}, v{LN}\nv_and_b32 v{t2}, 15, v{t2}")
    parts = [g[0] if g else 3 if wpitch != 3840 else 0 for g in gmap]; js = [g[1] if g else 0 for g in gmap]
    table(a, WV, t2, parts, 2, t, SPAIR)
    if wpitch == 3840: a(f"v_mul_u32_u24 v{WV}, 1280, v{WV}")
    else: a(f"v_lshlrev_b32 v{WV}, 28, v{WV}")
    table(a, XV0, t2, js, 4, t, SPAIR)
    a(f"v_lshl_add_u32 v{WV}, v{XV0}, 3, v{WV}\ns_mov_b32 s{ST}, {wpitch}\nv_mad_u32_u24 v{WV}, v{r}, s{ST}, v{WV}")
    a(f"v_and_b32 v{t}, 7, v{LN}\nv_xor_b32 v{t}, v{t}, v{r}\nv_lshrrev_b32 v{t2}, 3, v{LN}\nv_mul_u32_u24 v{t2}, 1280, v{t2}")
    a(f"v_lshl_add_u32 v{XV0}, v{t}, 4, v{t2}\nv_xor_b32 v{XV1}, 64, v{XV0}")
    a(f"s_mul_i32 s{ST}, s{SW}, {64 // NW * wpitch}\ns_add_u32 s{SWROW}, s{SWROW}, s{ST}\ns_mul_i32 s{ST}, s{SW}, {128 // NW * 1280}\ns_add_u32 s{SXROW}, s{SXROW}, s{ST}\ns_mul_i32 s{SM0}, s{SW}, {16384 // NW}")
    def dma(S, sel=3):
        L = []; b = (S % NS) * 32768
        for i in range(nd // 2):
            if sel & 1: L.append(f"s_add_u32 m0, s{SM0}, {b + i * 1024}\ns_add_u32 s{ST}, s{SWROW}, {(S * 64 + 4 * i) * wpitch}\nbuffer_load_dwordx4 v{WV}, {sr(SRDW, 4)}, s{ST} offen lds")
            if sel & 2: L.append(f"s_add_u32 m0, s{SM0}, {b + 16384 + i * 1024}\ns_add_u32 s{ST+1}, s{SXROW}, {8 * i * 1280 + S * 128}\nbuffer_load_dwordx4 v{XV1 if i & 1 else XV0}, {sr(SRDX, 4)}, s{ST+1} offen lds")
        return L
    for S in range(NS):
        for d in dma(S, 1 if wait else 3): a(d)
    if pre: pre()
    a(f"v_lshrrev_b32 v{t2}, 2, v{LN}\nv_and_b32 v{r}, 3, v{t2}\nv_and_b32 v{t2}, 4, v{t2}\nv_and_b32 v{t}, 3, v{LN}\nv_or_b32 v{T0+4}, v{t2}, v{t}")
    a(f"v_lshrrev_b32 v{t2}, 5, v{LN}\nv_lshl_add_u32 v{t2}, v{t2}, 3, v{r}\nv_lshlrev_b32 v{T0+5}, 8, v{t2}\nv_lshlrev_b32 v{r}, 3, v{r}")
    for tt in range(T):
        for ci, cm in enumerate(cmaps):
            vals = []
            for e in range(8):
                bs, sub = cm(4 * tt + 2 * (e >> 2) + ((e & 3) >> 1), e & 1); vals.append(bs * 2 + sub)
            table(a, WA + tt + 2 * ci, T0 + 4, vals, 8, t, SPAIR)
        if len(cmaps) > 1: a(f"s_cmp_ge_u32 s{SW}, 4\ns_cselect_b64 vcc, -1, 0\nv_cndmask_b32 v{WA+tt}, v{WA+tt}, v{WA+tt+2}, vcc")
        a(f"v_xor_b32 v{WA+tt}, v{WA+tt}, v{r}\nv_lshl_add_u32 v{WA+tt}, v{WA+tt}, 3, v{T0+5}")
    a(f"v_and_b32 v{t}, 31, v{LN}\nv_lshlrev_b32 v{t}, 7, v{t}\nv_lshrrev_b32 v{t2}, 1, v{LN}\nv_and_b32 v{t2}, 7, v{t2}\nv_lshrrev_b32 v{r}, 5, v{LN}\nv_xor_b32 v{t2}, v{t2}, v{r}")
    a(f"v_lshl_add_u32 v{t}, v{t2}, 4, v{t}\ns_and_b32 s{ST}, s{SW}, 3\ns_lshl_b32 s{ST}, s{ST}, 12\ns_add_u32 s{ST}, s{ST}, 16384\nv_add_u32 v{XA}, s{ST}, v{t}")
    for ks in range(1, 4): a(f"v_xor_b32 v{XA+ks}, {32 * ks}, v{XA}")
    def reads(n):
        s, ks = divmod(n, 4); b = (s % 2) * 32768; p = n & 1
        a(f"ds_read_b128 {vr(XB + 4 * p, 4)}, v{XA+ks} offset:{b}")
        for tt in range(T):
            for q in range(2): a(f"ds_read_b64_tr_b16 {vr(AB + 16 * p + 4 * tt + 2 * q, 2)}, v{WA+tt} offset:{b + (16 * ks + 4 * q) * 256}")
    if wait:
        wait()
        for S in range(NS):
            for d in dma(S, 2): a(d)
        a(f"s_waitcnt vmcnt({nd // 2 * (NS - 1)})\ns_barrier")
    else: a(f"s_waitcnt vmcnt({nd * (NS - 1) + (pre.n if pre else 0)})\ns_barrier"); stamp(a, 1); pre.post()
    reads(0)
    R = 1 + 2 * T
    for n in range(40):
        s, ks = divmod(n, 4); p = n & 1
        def mf(tt): a(f"v_mfma_f32_32x32x16_bf16 {vr(16 * tt, 16)}, {vr(AB + 16 * p + 4 * tt, 4)}, {vr(XB + 4 * p, 4)}, {vr(16 * tt, 16) if n else 0}")
        a(f"s_waitcnt lgkmcnt({2 * (T - 1)})"); mf(0)
        if n == 39:
            for tt in range(1, T): a(f"s_waitcnt lgkmcnt({2 * (T - 1 - tt)})"); mf(tt)
        elif ks < 3:
            reads(n + 1)
            for tt in range(1, T): a(f"s_waitcnt lgkmcnt({2 * (T - 1 - tt) + R})"); mf(tt)
        else:
            np = pre.n if pre and s == 0 and pre.late else 0
            a(f"s_waitcnt vmcnt({nd * (min(s + NS - 1, 9) - s - 1) + np}) lgkmcnt(0)\ns_barrier")
            reads(n + 1)
            D = dma(s + NS) if s + NS <= 9 else []
            for tt in range(1, T):
                mf(tt)
                k = (len(D) + T - 2) // (T - 1)
                for d in D[(tt - 1) * k: tt * k]: a(d)
QKV_G = [(0, 0), (0, 2), (1, 0), (1, 2), (0, 4), (0, 6), (1, 4), (1, 6), (0, 8), (1, 8), (2, 0), (2, 4), (2, 2), (2, 8), None, (2, 6)]
def qkv_c(u, h):
    if u == 15: return 14, h
    part, ch = (h, u) if u < 10 else (2, u - 10 + 5 * h)
    return QKV_G.index((part, ch & ~1)), ch & 1
A_G = [(0, 0), (0, 2), (1, 0), (1, 2), (2, 0), (2, 2), (0, 4), (1, 4), (0, 6), (1, 6), (0, 8), (1, 8), (2, 6), (2, 8), (2, 3), (2, 5)]
def a_c(hs):
    def f(u, h):
        if u == 7 and h: return (7, 1) if hs == 0 else (10, 0)
        part, ch = (h, 5 * hs + u) if u < 5 else (2, 5 * hs + [[0, 1, 4], [2, 3]][h][u - 5])
        if (part, ch) == (2, 4): return 14, 1
        if (part, ch) == (2, 5): return 15, 0
        return A_G.index((part, ch & ~1)), ch & 1
    return f
O_G = [(0, 0), (0, 2), (0, 5), (0, 7), (0, 3), (0, 8)] + [None] * 10
def o_c(u, h):
    return [[(0, 0), (0, 1), (1, 0), (1, 1), (4, 1), (6, 0), (6, 1), (7, 0)], [(2, 0), (2, 1), (3, 0), (3, 1), (5, 1), (6, 0), (6, 1), (7, 0)]][h][u]
def poll(a, L, t, srdr, soff, off, want, lanes):
    a(f"s_mov_b64 exec, {(1 << lanes) - 1}\nv_lshlrev_b32 v{t}, 2, v{LN}\ns_mov_b32 s53, 0")
    a(f"{L}_p:\ns_add_u32 s53, s53, 1\ns_cmp_ge_u32 s53, 0x100000\ns_cbranch_scc1 {L}_e\nbuffer_load_dword v{t+1}, v{t}, {sr(srdr, 4)}, {soff} offen offset:{off} sc1")
    a(f"s_waitcnt vmcnt(0)\nv_cmp_{'ne' if lanes > 1 else 'gt'}_u32 vcc, {want}, v{t+1}\ns_cbranch_vccnz {L}_p\n{L}_e:\ns_mov_b64 exec, -1")
def flinit(a, t):
    a(f"s_lshl_b32 s83, s2, 9\ns_add_u32 s83, s83, {FLOFF}\nv_lshlrev_b32 v{t}, 3, v{LN}\nv_mov_b32 v{t+2}, 0\nv_mov_b32 v{t+3}, 0")
    a(f"s_cmp_lg_u32 s{SW}, 0\ns_cbranch_scc1 fi{t}\nbuffer_store_dwordx2 {vr(t + 2, 2)}, v{t}, s[16:19], s83 offen sc1\nfi{t}:")
def flready(a, role, L):
    a(f"s_cmp_lg_u32 s{SW}, 0\ns_cbranch_scc1 {L}\nv_mov_b32 v122, 0\nv_mov_b32 v123, 1\ns_mov_b64 exec, 1\nbuffer_atomic_add v123, v122, s[44:47], 0 offen offset:{128 * role} sc1\ns_mov_b64 exec, -1\n{L}:")
def initld(a, role, d): a(f"v_mov_b32 v{d}, 0\nbuffer_load_dword v{d}, v{d}, s[44:47], 0 offen offset:{128 * role} sc1")
def signal(a, sync, role, L, t, chk=None, extra=None):
    a(f"s_waitcnt vmcnt(0)\ns_barrier\ns_cmp_lg_u32 s{SW}, 0\ns_cbranch_scc1 {L}_s")
    if chk is not None:
        a(f"v_readfirstlane_b32 s52, v{chk}\ns_cmpk_ge_u32 s52, 256\ns_cbranch_scc1 {L}_c"); poll(a, L + "i", t, 44, 0, 128 * role, "0x100", 1); a(f"{L}_c:")
    if sync == 0: a(f"s_and_b32 s3, s2, 0x11b\nv_lshrrev_b32 v{t}, 3, v{LN}\nv_and_b32 v{t+1}, 7, v{LN}\nv_lshlrev_b32 v{t}, 2, v{t}\nv_lshl_or_b32 v{t}, v{t+1}, 5, v{t}\ns_lshl_b32 s52, s32, 2")
    else: a(f"s_lshr_b32 s3, s32, 1\ns_and_b32 s52, s32, 1\ns_lshl_b32 s52, s52, 3\ns_or_b32 s3, s3, s52\ns_or_b32 s3, s3, {256 * role}\nv_lshlrev_b32 v{t}, 4, v{LN}\ns_lshl_b32 s52, s33, 2")
    a(f"v_or_b32 v{t}, s3, v{t}\nv_lshlrev_b32 v{t}, 9, v{t}\nv_mov_b32 v{t+1}, 1\ns_add_u32 s52, s52, {FLOFF}\ns_mov_b64 exec, 0xffff")
    a(f"buffer_store_dword v{t+1}, v{t}, s[16:19], s52 offen offset:{128 * sync} sc1")
    if extra: extra()
    a(f"s_mov_b64 exec, -1\n{L}_s:")
def waitfor(a, sync, L, t):
    a(f"s_cmp_lg_u32 s{SW}, 0\ns_cbranch_scc1 {L}_go"); poll(a, L, t, 16, "s83", 128 * sync, 1, 16); a(f"{L}_go:\ns_barrier")
def ids(a):
    a("s_and_b32 s3, s2, 3\ns_lshl_b32 s3, s3, 2\ns_bfe_u32 s33, s2, 0x20003\ns_add_u32 s33, s33, s3")
    a("s_bfe_u32 s3, s2, 0x10002\ns_lshl_b32 s3, s3, 3\ns_bfe_u32 s32, s2, 0x30005\ns_add_u32 s32, s32, s3")
    a("s_and_b32 s3, s2, 7\ns_lshl_b32 s3, s3, 1\ns_bfe_u32 s54, s2, 0x10003\ns_add_u32 s54, s54, s3\ns_bfe_u32 s55, s2, 0x40004")
    a(f"s_mul_i32 s{SWROW}, s33, 80\ns_mul_i32 s{SXROW}, s32, {128 * 1280}")
def l2pre(a, NW, t, D):
    n = 0
    a(f"s_lshl_b32 s3, s{SW}, 6\nv_add_u32 v{t}, s3, v{LN}\ns_bfe_u32 s34, s2, 0x20003\ns_mul_i32 s35, s34, {32 * 1280}\ns_mul_i32 s3, s32, {128 * 1280}\ns_add_u32 s35, s35, s3")
    for i in range(0, 320, 64 * NW):
        a(f"v_add_u32 v{t+1}, {i}, v{t}\nv_min_u32 v{t+1}, 319, v{t+1}\nv_lshlrev_b32 v{t+1}, 7, v{t+1}\nbuffer_load_dword v{D+n}, v{t+1}, s[12:15], s35 offen"); n += 1
    a(f"s_bfe_u32 s3, s2, 0x30005\ns_lshl_b32 s3, s3, 2\ns_add_u32 s3, s3, s34\ns_mul_i32 s35, s3, {20 * 3840}\ns_and_b32 s3, s2, 3\ns_mul_i32 s3, s3, 320\ns_add_u32 s35, s35, s3")
    a(f"v_min_u32 v{t}, 239, v{t}\nv_lshrrev_b32 v{t+1}, 2, v{t}\nv_and_b32 v{t}, 3, v{t}\nv_mul_u32_u24 v{t+1}, 1280, v{t+1}\nv_mul_u32_u24 v{t}, 104, v{t}\nv_add_u32 v{t}, v{t}, v{t+1}")
    a(f"buffer_load_dword v{D+n}, v{t}, s[8:11], s35 offen"); n += 1
    return n
def head(a, n, L):
    a(f"s_cmp_ge_u32 s2, {n}\ns_cbranch_scc1 {L}_end\nv_lshrrev_b32 v1, 6, v0\nv_and_b32 v{LN}, 63, v0\nv_readfirstlane_b32 s{SW}, v1"); stamp(a, 0)
MF = "v_mfma_f32_32x32x16_bf16"
CH = 24576
def attn(a):
    S = [0, 16]; O, P, K0, K1, V0, V1, Q0, Q1 = 32, 48, 56, 60, 64, 68, 72, 76
    KA0, KA1, VA, DV, KV0, KV1, M, t = 80, 81, 82, 83, 84, 85, 86, 88
    a("s_load_dwordx4 s[4:7], s[0:1], 0\ns_load_dwordx2 s[36:37], s[0:1], 16\ns_load_dwordx2 s[30:31], s[0:1], 56\ns_load_dwordx4 s[48:51], s[0:1], 64\ns_setprio 2")
    ids(a); a("s_waitcnt lgkmcnt(0)")
    srd(a, 8, 6, 640 * 3840); srd(a, 12, 4, 2048 * 1280); srd(a, 16, 50, WSEND); srd(a, 44, 48, 256); srd(a, 56, 36, 640 * 1280); srd(a, 60, 30, 2048 * 2560)
    flinit(a, 0)
    def pre(): pre.n = l2pre(a, 8, T0, 124)
    pre.late = True; pre.post = lambda: flready(a, 0, "a_fr")
    gemm(a, 2, 2, 8, A_G, [a_c(0), a_c(1)], 3840, 8, 12, pre); stamp(a, 2)
    initld(a, 0, 124)
    a(f"s_lshr_b32 s39, s{SW}, 2\ns_lshl_b32 s3, s33, 1\ns_add_u32 s3, s3, s39\ns_mul_i32 s38, s3, {HSZ}\ns_mov_b32 s37, 0")
    a(f"v_and_b32 v{t}, 31, v{LN}\nv_lshrrev_b32 v{t+1}, 5, v{LN}\nv_mul_u32_u24 v{t}, 48, v{t}\nv_lshl_add_u32 v{KV0}, v{t+1}, 4, v{t}\nv_add_u32 v{KV1}, 32, v{t}")
    a(f"v_cmp_gt_u32 vcc, 32, v{LN}\nv_mov_b32 v{t+2}, {f2u(LOG2E / 20 ** 0.5)}\nv_cndmask_b32 v{t+2}, 1.0, v{t+2}, vcc")
    a(f"v_mov_b32 v{t+3}, {VOFF - KOFF}\nv_cndmask_b32 v{t+3}, 0, v{t+3}, vcc\nv_add_u32 v{t+3}, v{t+3}, v{KV1}")
    a(f"s_lshl_b32 s3, s32, 2\ns_and_b32 s34, s{SW}, 3\ns_add_u32 s43, s3, s34\ns_mul_i32 s3, s43, 1536\ns_add_u32 s34, s3, s38\ns_add_u32 s35, s34, {VOFF}\ns_add_u32 s34, s34, {KOFF}\ns_mul_i32 s31, s43, 40960")
    for i in range(4): a(f"v_cvt_pk_bf16_f32 v{36+i}, v{20+2*i}, v{21+2*i}")
    a(f"buffer_store_dwordx4 v[36:39], v{KV0}, s[16:19], s35 offen sc1")
    for i in range(20): a(f"v_mul_f32 v{i}, v{t+2}, v{i}")
    for i in range(4): a(f"v_cvt_pk_bf16_f32 v{Q0+i}, v{2*i}, v{2*i+1}\nv_cvt_pk_bf16_f32 v{32+i}, v{8+2*i}, v{9+2*i}")
    for i in range(4): a(f"v_permlane32_swap_b32 v{Q0+i}, v{32+i}")
    a(f"buffer_store_dwordx4 v[32:35], v{KV0}, s[16:19], s34 offen sc1")
    a(f"v_cvt_pk_bf16_f32 v44, v16, v17\nv_cvt_pk_bf16_f32 v45, v18, v19\nv_cvt_pk_bf16_f32 v46, v28, v29\nv_cvt_pk_bf16_f32 v47, v30, v31")
    a(f"v_cndmask_b32 v40, v44, v46, vcc\nv_cndmask_b32 v41, v45, v47, vcc\nv_mov_b32 v42, 0x3f803f80\nv_mov_b32 v43, 0x3f80")
    a(f"buffer_store_dwordx4 v[40:43], v{t+3}, s[16:19], s34 offen sc1\nv_cndmask_b32 v{Q1}, 0, v44, vcc\nv_cndmask_b32 v{Q1+1}, 0, v45, vcc")
    a(f"v_mov_b32 v{t}, 0\nv_mov_b32 v{t+1}, {3 * CH}\nds_write_b32 v{t+1}, v{t}\nv_lshlrev_b32 v{DV}, 4, v{LN}")
    a(f"s_bfe_u32 s40, s{SW}, 0x10001\ns_mul_i32 s40, s40, {VOFF - KOFF}\ns_and_b32 s3, s{SW}, 1\ns_mul_i32 s3, s3, 3072\ns_add_u32 s40, s40, s3\ns_add_u32 s40, s40, s38\ns_add_u32 s40, s40, {KOFF}")
    a(f"s_mul_i32 s41, s{SW}, 3072\ns_mul_i32 s30, s39, 12288")
    signal(a, 0, 0, "aq", t, 124); stamp(a, 3); waitfor(a, 0, "aq", t); stamp(a, 4); a("s_setprio 0")
    def dma():
        a("s_mov_b32 m0, s35")
        for j in range(3): a(f"buffer_load_dwordx4 v{DV}, s[16:19], s34 offen offset:{1024 * j} lds")
    a("at_start:\ns_mov_b32 s34, s40\ns_mov_b32 s35, s41"); dma()
    a(f"s_add_u32 s42, s38, {KOFF}\ns_lshl_b32 s43, s37, 6\ns_max_u32 s43, s43, 1\nv_mov_b32 v{M}, 0xff800000\nv_mov_b32 v{Q1+2}, 0\nv_mov_b32 v{Q1+3}, 0")
    a(f"at_max:\nbuffer_load_dwordx4 {vr(K0, 4)}, v{KV0}, s[16:19], s42 offen\nbuffer_load_dwordx4 {vr(K1, 4)}, v{KV1}, s[16:19], s42 offen")
    a(f"s_add_u32 s42, s42, 1536\ns_sub_u32 s43, s43, 1\ns_waitcnt vmcnt(0)")
    a(f"{MF} {vr(0, 16)}, {vr(K0, 4)}, {vr(Q0, 4)}, 0\n{MF} {vr(0, 16)}, {vr(K1, 4)}, {vr(Q1, 4)}, {vr(0, 16)}")
    for i in range(8): a(f"v_max3_f32 v{M}, v{M}, v{2*i}, v{2*i+1}")
    a("s_cmp_lg_u32 s43, 0\ns_cbranch_scc1 at_max\ns_barrier")
    a(f"s_add_u32 s34, s34, {CH // 4}\ns_add_u32 s35, s35, {CH}"); dma()
    a(f"v_add_u32 v{KA0}, s30, v{KV0}\nv_add_u32 v{KA1}, s30, v{KV1}\nv_mov_b32 v{t}, v{M}\nv_permlane32_swap_b32 v{M}, v{t}\nv_max_f32 v{M}, v{M}, v{t}")
    a(f"v_xor_b32 v{M}, 0x80000000, v{M}\nv_and_b32 v{t}, 0xffff0000, v{M}\nv_sub_f32 v{M}, v{M}, v{t}\nv_and_b32 v{t+1}, 0xffff0000, v{M}\nv_sub_f32 v{M}, v{M}, v{t+1}")
    a(f"v_lshrrev_b32 v{t}, 16, v{t}\nv_or_b32 v{t}, v{t}, v{t+1}\nv_lshrrev_b32 v{M}, 16, v{M}\nv_cmp_gt_u32 vcc, 32, v{LN}\nv_cndmask_b32 v{Q1+2}, 0, v{t}, vcc\nv_cndmask_b32 v{Q1+3}, 0, v{M}, vcc")
    a(f"ds_read_b128 {vr(K0, 4)}, v{KA0}\nds_read_b128 {vr(K1, 4)}, v{KA1}")
    a(f"v_lshrrev_b32 v{t}, 2, v{LN}\nv_and_b32 v{t+1}, 3, v{t}\nv_and_b32 v{t}, 4, v{t}\nv_and_b32 v{t+2}, 3, v{LN}\nv_or_b32 v{t+4}, v{t}, v{t+2}")
    a(f"v_lshrrev_b32 v{t}, 5, v{LN}\nv_lshl_add_u32 v{t+1}, v{t}, 2, v{t+1}\nv_mul_u32_u24 v{t+5}, 48, v{t+1}")
    a(f"s_lshl_b32 s3, s39, 3\nv_add_u32 v{t+4}, s3, v{t+4}")
    table(a, VA, t + 4, [0, 2, 1, 3, 4, 5, 5, 5, 1, 3, 2, 4, 0, 5, 5, 5], 4, t + 2, SPAIR)
    a(f"v_lshl_add_u32 v{VA}, v{VA}, 3, v{t+5}\ns_add_u32 s3, s30, {CH // 4}\nv_add_u32 v{VA}, s3, v{VA}")
    for i in range(16): a(f"v_mov_b32 v{O+i}, 0")
    for i in range(4): a(f"v_mov_b32 v{P+4+i}, 0\nv_mov_b32 v{V1+i}, 0")
    a(f"s_waitcnt lgkmcnt(0)\n{MF} {vr(0, 16)}, {vr(K0, 4)}, {vr(Q0, 4)}, 0\n{MF} {vr(0, 16)}, {vr(K1, 4)}, {vr(Q1, 4)}, {vr(0, 16)}")
    a(f"ds_read_b128 {vr(K0, 4)}, v{KA0} offset:1536\nds_read_b128 {vr(K1, 4)}, v{KA1} offset:1536")
    a(f"s_movk_i32 s82, {CH}\ns_mov_b32 s36, 0\ns_mov_b32 s80, 0\ns_mov_b32 s81, 0\ns_waitcnt lgkmcnt(0)\nat_loop:")
    def ex(c, q):
        for i in range(4): a(f"v_exp_f32 v{c+4*q+i}, v{c+4*q+i}")
        a(f"v_cvt_pk_bf16_f32 v{P+2*q}, v{c+4*q}, v{c+4*q+1}\nv_cvt_pk_bf16_f32 v{P+2*q+1}, v{c+4*q+2}, v{c+4*q+3}")
    def vrd(d, u, s):
        for p in range(2): a(f"ds_read_b64_tr_b16 {vr(d + 2 * p, 2)}, v{VA} offset:{u * 1536 + (16 * s + 8 * p) * 48}")
    W = "s_waitcnt lgkmcnt(3)\n"
    for u in range(4):
        c, n = S[u & 1], S[1 - (u & 1)]; ko = ((u + 2) & 3) * 1536
        if u == 0: a(f"v_add_u32 v{VA}, s81, v{VA}")
        a(W + f"{MF} {vr(n, 16)}, {vr(K0, 4)}, {vr(Q0, 4)}, 0"); vrd(V0, u, 0)
        if u == 2:
            a(f"s_add_u32 s80, s80, 1\ns_cmp_eq_u32 s80, 3\ns_cselect_b32 s81, {-2 * CH}, s82\ns_cselect_b32 s80, 0, s80\nv_add_u32 v{KA0}, s81, v{KA0}\nv_add_u32 v{KA1}, s81, v{KA1}")
            a(f"s_add_u32 s34, s34, {CH // 4}\ns_add_u32 s35, s35, {CH}\ns_cmp_eq_u32 s80, 2\ns_cselect_b32 s35, s41, s35")
        ex(c, 0)
        if u == 2:
            a("s_waitcnt vmcnt(0)\ns_barrier\ns_cmp_ge_u32 s36, 14\ns_cbranch_scc1 at_nodma"); dma(); a("at_nodma:")
        a(W + f"{MF} {vr(O, 16)}, {vr(V1, 4)}, {vr(P + 4, 4)}, {vr(O, 16)}\nds_read_b128 {vr(K0, 4)}, v{KA0} offset:{ko}"); ex(c, 1)
        a(W + f"{MF} {vr(n, 16)}, {vr(K1, 4)}, {vr(Q1, 4)}, {vr(n, 16)}"); vrd(V1, u, 1); ex(c, 2)
        a(W + f"{MF} {vr(O, 16)}, {vr(V0, 4)}, {vr(P, 4)}, {vr(O, 16)}\nds_read_b128 {vr(K1, 4)}, v{KA1} offset:{ko}"); ex(c, 3)
    a("s_add_u32 s36, s36, 1\ns_cmp_lt_u32 s36, 16\ns_cbranch_scc1 at_loop"); stamp(a, 5)
    a(f"s_waitcnt lgkmcnt(0)\n{MF} {vr(O, 16)}, {vr(V1, 4)}, {vr(P + 4, 4)}, {vr(O, 16)}")
    a(f"v_and_b32 v{t+1}, 31, v{LN}\nv_lshlrev_b32 v{t}, 4, v{LN}\nv_lshlrev_b32 v{t+1}, 4, v{t+1}\nv_lshrrev_b32 v{t+2}, 5, v{LN}\nv_lshl_add_u32 v{t+1}, v{t+2}, 30, v{t+1}")
    a(f"s_mul_i32 s3, s33, 2560\ns_add_u32 s42, s3, s31\ns_add_u32 s42, s42, {OAOFF}\ns_lshl_b32 s3, s39, 3\ns_add_u32 s43, s42, s3\ns_mul_i32 s3, s39, 1536\ns_add_u32 s42, s42, s3")
    a(f"v_mov_b32 v{t+2}, {f2u(2.0 ** 40)}\nv_mov_b32 v{t+3}, {3 * CH}\nv_mov_b32 v{t+4}, 1")
    a(f"v_cmp_nlt_f32 vcc, v{O+12}, v{t+2}\nv_rcp_f32 v{M}, v{O+12}\ns_cbranch_vccz at_ok\nds_write_b32 v{t+3}, v{t+4}\nat_ok:")
    for i in range(6): a(f"v_mul_f32 v{O+2*i}, v{M}, v{O+2*i}\nv_mul_f32 v{O+2*i+1}, v{M}, v{O+2*i+1}\nv_cvt_pk_bf16_f32 v{P+i}, v{O+2*i}, v{O+2*i+1}")
    a(f"buffer_store_dwordx4 {vr(P, 4)}, v{t}, s[16:19], s42 offen sc1\nbuffer_store_dwordx2 {vr(P + 4, 2)}, v{t+1}, s[16:19], s43 offen offset:1024 sc1")
    a(f"s_cmp_lg_u32 s37, 0\ns_cbranch_scc1 at_done\ns_waitcnt lgkmcnt(0)\ns_barrier\nds_read_b32 v{t}, v{t+3}\ns_waitcnt lgkmcnt(0)\nv_readfirstlane_b32 s37, v{t}")
    a("s_cmp_lg_u32 s37, 0\ns_cbranch_scc1 at_start\nat_done:\ns_setprio 2")
    signal(a, 1, 0, "ao", t)
    a(f"s_mul_i32 s34, s55, 80\ns_lshl_b32 s35, s{SW}, 10\ns_lshl_b32 s3, s{SW}, 6\nv_add_u32 v0, s3, v{LN}\ns_mov_b32 s36, 52429")
    for i in range(7):
        if i == 6: a(f"s_cmp_ge_u32 s{SW}, 2\ns_cbranch_scc1 f_nod")
        a(f"v_mul_u32_u24 v1, s36, v0\nv_lshrrev_b32 v1, 18, v1\nv_mul_u32_u24 v1, 1200, v1\nv_lshl_add_u32 v{2+i}, v0, 4, v1\ns_add_u32 m0, s35, {8192 * i}\nv_add_u32 v0, 512, v0")
        a(f"buffer_load_dwordx4 v{2+i}, s[56:59], s34 offen lds")
    L, A0, A1, XV = 127, 124, 125, 126
    a(f"f_nod:\nv_mov_b32 v{L}, v{LN}\nv_bfe_u32 v0, v{L}, 2, 2\nv_lshrrev_b32 v1, 5, v{L}\nv_lshl_add_u32 v0, v1, 3, v0\nv_mul_u32_u24 v0, 80, v0\ns_mul_i32 s3, s39, 25600\nv_add_u32 v0, s3, v0")
    a(f"v_and_b32 v1, 1, v{L}\nv_mul_u32_u24 v1, 40, v1\nv_add_u32 v0, v0, v1\nv_add_u32 v{A1}, 32, v0\nv_bfe_u32 v1, v{L}, 1, 1\nv_bfe_u32 v2, v{L}, 4, 1\nv_lshl_add_u32 v1, v2, 1, v1\nv_lshl_add_u32 v{A0}, v1, 3, v0")
    a(f"v_lshlrev_b32 v{XV}, 4, v{L}\ns_lshl_b32 s3, s54, 2\ns_and_b32 s36, s{SW}, 3\ns_add_u32 s43, s3, s36\ns_mul_i32 s34, s43, 40960\ns_mul_i32 s3, s39, 20480\ns_add_u32 s34, s34, s3\ns_add_u32 s34, s34, {OAOFF}")
    a("s_waitcnt vmcnt(0)"); waitfor(a, 1, "ao", 0); stamp(a, 6)
    for k in range(20):
        a(f"buffer_load_dwordx4 {vr(32 + 4 * k, 4)}, v{XV}, s[16:19], s34 offen offset:{(k & 3) * 1024} sc1")
        if k & 3 == 3: a("s_add_u32 s34, s34, 4096")
    def rd(n):
        k, T = divmod(n, 2)
        for p in range(2): a(f"ds_read_b64_tr_b16 {vr(112 + 4 * (n % 3) + 2 * p, 2)}, v{A1 if T else A0} offset:{(16 * k + 4 * p) * 80}")
    rd(0); rd(1)
    for n in range(40):
        k, T = divmod(n, 2)
        if n + 2 < 40: rd(n + 2)
        a(f"s_waitcnt vmcnt({19 - k}) lgkmcnt({2 * min(2, 39 - n)})\n{MF} {vr(16 * T, 16)}, {vr(112 + 4 * (n % 3), 4)}, {vr(32 + 4 * k, 4)}, {vr(16 * T, 16) if k else 0}")
    a(f"s_mul_i32 s3, s36, 5120\ns_add_u32 s3, s3, 51200\nv_add_u32 v{XV}, s3, v{XV}\ns_cmp_eq_u32 s39, 0\ns_cbranch_scc1 f_lo")
    for q in range(5): a(f"ds_write_b128 v{XV}, {vr(4 * q, 4)} offset:{1024 * q}")
    a("s_waitcnt lgkmcnt(0)\ns_barrier\ns_endpgm\nf_lo:\ns_barrier")
    for q in range(5): a(f"ds_read_b128 {vr(32 + 4 * q, 4)}, v{XV} offset:{1024 * q}")
    outst(a, L, 43, 0, red=True)
    tsout(a, 0, 8, "at_ts"); a("s_endpgm")
def outst(a, L, tile, col0, red):
    a(f"v_and_b32 v60, 31, v{L}\nv_lshrrev_b32 v61, 5, v{L}\nv_mul_u32_u24 v60, 2560, v60\nv_mad_u32_u24 v60, v61, 40, v60\ns_mul_i32 s3, s{tile}, {32 * 2560}\ns_mul_i32 s34, s55, 80\ns_add_u32 s3, s3, s34\ns_add_u32 s3, s3, {col0}")
    for i in range(10):
        if red: a(f"s_waitcnt lgkmcnt({4 - i // 2})\nv_add_f32 v{2*i}, v{2*i}, v{32+2*i}\nv_add_f32 v{2*i+1}, v{2*i+1}, v{33+2*i}")
        a(f"v_cvt_pk_bf16_f32 v{64+i}, v{2*i}, v{2*i+1}")
    a("buffer_store_dwordx4 v[64:67], v60, s[60:63], s3 offen\nbuffer_store_dwordx4 v[68:71], v60, s[60:63], s3 offen offset:16\nbuffer_store_dwordx2 v[72:73], v60, s[60:63], s3 offen offset:32")
    if TS: a("s_waitcnt vmcnt(0)")
WPH, ZR, PHK, VP, KVB = 65536, 67584, 0, 20480, 32768
def brole(a):
    a(f"s_cmp_ge_u32 s{SW}, {0 if 'nob' in X else 4}\ns_cbranch_scc1 k2_end")
    a("s_load_dwordx4 s[4:7], s[0:1], 24\ns_load_dwordx4 s[36:39], s[0:1], 40\ns_load_dwordx2 s[30:31], s[0:1], 56\ns_load_dwordx4 s[48:51], s[0:1], 64\ns_setprio 1")
    ids(a); a("s_waitcnt lgkmcnt(0)")
    srd(a, 8, 6, 640 * 3840); srd(a, 12, 4, 2048 * 1280); srd(a, 16, 50, WSEND); srd(a, 40, 36, 25600); srd(a, 44, 48, 256); srd(a, 56, 38, 640 * 1280); srd(a, 60, 30, 2048 * 2560)
    t = T0; flinit(a, 4)
    def pre():
        a(f"s_and_b32 s3, s{SW}, 1\ns_lshl_b32 s3, s3, 10\ns_add_u32 m0, s3, {WPH}\ns_mul_i32 s34, s33, 1600\ns_add_u32 s34, s34, s3\nv_lshlrev_b32 v{t}, 4, v{LN}")
        a(f"buffer_load_dwordx4 v{t}, s[40:43], s34 offen lds")
        a(f"s_lshl_b32 s3, s{SW}, 9\ns_add_u32 s3, s3, {ZR}\nv_lshl_add_u32 v{t+1}, v{LN}, 3, s3\nv_mov_b32 v{t+2}, 0\nv_mov_b32 v{t+3}, 0\nds_write_b64 v{t+1}, {vr(t + 2, 2)}")
        pre.n = 1 + l2pre(a, 4, T0, 124)
    pre.late = True; pre.post = lambda: flready(a, 1, "b_fr")
    gemm(a, 4, 2, 4, QKV_G, [qkv_c], 3840, 8, 12, pre); stamp(a, 2)
    H, G1, R, C = 104, 105, 106, 107
    a(f"v_lshrrev_b32 v{H}, 5, v{LN}\nv_bfe_u32 v{G1}, v{LN}, 4, 1\nv_bfe_u32 v{R}, v{LN}, 2, 2\nv_and_b32 v{C}, 3, v{LN}")
    a(f"v_and_b32 v{t}, 1, v{C}\nv_cmp_eq_u32 vcc, v{t}, v{H}\nv_lshrrev_b32 v{t}, 1, v{C}\nv_lshl_add_u32 v{t}, v{G1}, 1, v{t}\nv_mul_u32_u24 v{t+1}, 40, v{R}")
    a(f"v_lshl_add_u32 v{t+2}, v{t}, 3, v{t+1}\nv_add_u32 v{t+2}, {WPH}, v{t+2}\nv_mov_b32 v{t+3}, {ZR}\nv_cndmask_b32 v108, v{t+3}, v{t+2}, vcc")
    a(f"v_cmp_eq_u32 s[34:35], 0, v{t}\ns_and_b64 vcc, vcc, s[34:35]\nv_add_u32 v{t+2}, 32, v{t+2}\nv_cndmask_b32 v109, v{t+3}, v{t+2}, vcc")
    for n in range(3):
        p = 64 + 12 * n
        for i in range(10): a(f"v_cvt_pk_bf16_f32 v{p+i}, v{20*n+2*i}, v{20*n+2*i+1}")
        a(f"v_mov_b32 v{p+10}, {0x3f80 if n == 2 else 0}\nv_mov_b32 v{p+11}, 0")
    a(f"v_and_b32 v110, 31, v{LN}\ns_lshl_b32 s3, s{SW}, 5\nv_add_u32 v110, s3, v110")
    a(f"v_mul_u32_u24 v{t}, 48, v110\nv_mul_u32_u24 v{t+1}, 6144, v{H}\ns_movk_i32 s3, {VP}\nv_add3_u32 v{t}, v{t}, v{t+1}, s3\ns_barrier")
    for q in range(3): a(f"ds_write_b128 v{t}, {vr(88 + 4 * q, 4)} offset:{16 * q}")
    for n in range(2):
        for T in range(2):
            for s in range(3):
                A = 88 + 4 * ((2 * n + T + s) % 3)
                if T == 0 and s == 0 and n == 0: a("s_waitcnt lgkmcnt(0)")
                a(f"ds_read_b64_tr_b16 {vr(A, 2)}, v{108+T} offset:{800 * n + 320 * s}")
                if s < 2: a(f"ds_read_b64_tr_b16 {vr(A + 2, 2)}, v{108+T} offset:{800 * n + 320 * s + 160}")
                else: a(f"v_mov_b32 v{A+2}, 0\nv_mov_b32 v{A+3}, 0")
                d = 32 * n + 16 * T
                a(f"s_waitcnt lgkmcnt(0)\n{MF} {vr(d, 16)}, {vr(A, 4)}, {vr(64 + 12 * n + 4 * s, 4)}, {vr(d, 16) if s else 0}")
    MX, MN, SP, SN = t, t + 1, t + 2, t + 3
    a(f"s_mov_b32 s3, {f2u(LOG2E)}")
    for n in range(2):
        x = 32 * n; e = 32 * (1 - n) + 20 if n == 0 else 0; Pn = 64 + 20 * n
        E = [120 + i if i < 8 else x + 20 + i - 8 for i in range(20)]
        a(f"v_max3_f32 v{MX}, v{x}, v{x+1}, v{x+2}\nv_min3_f32 v{MN}, v{x}, v{x+1}, v{x+2}")
        for i in range(3, 19, 2): a(f"v_max3_f32 v{MX}, v{MX}, v{x+i}, v{x+i+1}\nv_min3_f32 v{MN}, v{MN}, v{x+i}, v{x+i+1}")
        a(f"v_max_f32 v{MX}, v{MX}, v{x+19}\nv_min_f32 v{MN}, v{MN}, v{x+19}\nv_mul_f32 v{MX}, s3, v{MX}\nv_mul_f32 v{MN}, s3, v{MN}")
        for i in range(20): a(f"v_fma_f32 v{E[i]}, -v{x+i}, s3, v{MN}\nv_fma_f32 v{x+i}, v{x+i}, s3, -v{MX}")
        for i in range(20): a(f"v_exp_f32 v{E[i]}, v{E[i]}\nv_exp_f32 v{x+i}, v{x+i}")
        a(f"v_add_f32 v{SP}, v{x}, v{x+1}\nv_add_f32 v{SN}, v{E[0]}, v{E[1]}")
        for i in range(2, 20): a(f"v_add_f32 v{SP}, v{SP}, v{x+i}\nv_add_f32 v{SN}, v{SN}, v{E[i]}")
        a(f"v_rcp_f32 v{SP}, v{SP}\nv_rcp_f32 v{SN}, v{SN}")
        for i in range(20): a(f"v_mul_f32 v{x+i}, v{SP}, v{x+i}\nv_mul_f32 v{E[i]}, v{SN}, v{E[i]}")
        for i in range(10): a(f"v_cvt_pk_bf16_f32 v{Pn+i}, v{x+2*i}, v{x+2*i+1}\nv_cvt_pk_bf16_f32 v{Pn+10+i}, v{E[2*i]}, v{E[2*i+1]}")
    for i in range(20): a(f"v_permlane32_swap_b32 v{64+i}, v{84+i}")
    a(f"v_mul_u32_u24 v{t}, 80, v110\nv_mul_u32_u24 v{t+1}, 10240, v{H}\nv_add_u32 v{t}, v{t}, v{t+1}")
    for q in range(5): a(f"ds_write_b128 v{t}, {vr(84 + 4 * q, 4)} offset:{PHK + 16 * q}")
    initld(a, 1, 124)
    a(f"s_lshr_b32 s34, s{SW}, 1\ns_and_b32 s35, s{SW}, 1\nv_lshl_add_u32 v{t}, v{H}, 3, v{R}\nv_lshl_add_u32 v{t+1}, v{G1}, 2, v{C}")
    a(f"s_lshl_b32 s3, s35, 3\nv_add_u32 v{t+2}, s3, v{t+1}\nv_min_u32 v{t+2}, 9, v{t+2}\nv_min_u32 v{t+1}, 5, v{t+1}")
    a(f"v_mul_u32_u24 v108, 80, v{t}\nv_lshl_add_u32 v108, v{t+2}, 3, v108\ns_mul_i32 s3, s34, 10240\nv_add_u32 v108, s3, v108")
    a(f"v_mul_u32_u24 v109, 48, v{t}\nv_lshl_add_u32 v109, v{t+1}, 3, v109\ns_mul_i32 s3, s34, 6144\ns_add_u32 s3, s3, {VP}\nv_add_u32 v109, s3, v109")
    a("s_waitcnt lgkmcnt(0)\ns_barrier")
    for hf in range(2):
        for s in range(4 * hf, 4 * hf + 4):
            for p in range(2):
                a(f"ds_read_b64_tr_b16 {vr(16 + 8 * (s & 3) + 2 * p, 2)}, v108 offset:{(16 * s + 4 * p) * 80}")
                a(f"ds_read_b64_tr_b16 {vr(20 + 8 * (s & 3) + 2 * p, 2)}, v109 offset:{(16 * s + 4 * p) * 48}")
            if s & 3 == 2: a("s_waitcnt lgkmcnt(0)")
        a("s_waitcnt lgkmcnt(0)")
        for s in range(4 * hf, 4 * hf + 4): a(f"{MF} {vr(0, 16)}, {vr(16 + 8 * (s & 3), 4)}, {vr(20 + 8 * (s & 3), 4)}, {vr(0, 16) if s else 0}")
    a(f"v_and_b32 v{t}, 31, v{LN}\nv_cmp_lt_u32 vcc, 20, v{t}\nv_mul_u32_u24 v{t}, 160, v{t}\nv_lshl_add_u32 v{t}, v{H}, 4, v{t}\nv_mov_b32 v{t+1}, 0x40000000\nv_cndmask_b32 v{t}, v{t}, v{t+1}, vcc")
    a(f"s_lshl_b32 s3, s33, 1\ns_add_u32 s3, s3, s34\ns_lshl_b32 s3, s3, 4\ns_add_u32 s3, s3, s32\ns_mul_i32 s3, s3, {KVP}\ns_lshl_b32 s38, s35, 7\ns_add_u32 s3, s3, s38\ns_add_u32 s3, s3, {KVOFF}")
    a(f"buffer_store_dwordx4 {vr(0, 4)}, v{t}, s[16:19], s3 offen sc1\ns_cmp_eq_u32 s35, 1\ns_cbranch_scc1 b_st")
    for j in range(1, 4): a(f"buffer_store_dwordx4 {vr(4 * j, 4)}, v{t}, s[16:19], s3 offen offset:{32 * j} sc1")
    a("b_st:"); signal(a, 0, 1, "bk", t, 124); stamp(a, 3); waitfor(a, 0, "bk", t); stamp(a, 4)
    a(f"s_lshl_b32 s3, s{SW}, 6\nv_add_u32 v111, s3, v{LN}\ns_mul_i32 s34, s33, {32 * KVP}\ns_add_u32 s34, s34, {KVOFF}")
    for rnd in range(2):
        a(f"v_cmp_le_u32 vcc, 210, v111\nv_cndmask_b32 v{t}, 0, 1, vcc\nv_mul_u32_u24 v{t+1}, {16 * KVP - 210 * 16}, v{t}\nv_lshl_add_u32 v{t+1}, v111, 4, v{t+1}")
        a(f"v_cmp_le_u32 vcc, 420, v111\nv_mov_b32 v{t+2}, 0x40000000\nv_cndmask_b32 v{t+1}, v{t+1}, v{t+2}, vcc\ns_mov_b32 s35, s34")
        for b in range(16): a(f"buffer_load_dwordx4 {vr(4 * b, 4)}, v{t+1}, s[16:19], s35 offen sc1\ns_add_u32 s35, s35, {KVP}")
        a(f"v_lshlrev_b32 v{t+3}, 3, v111\nv_add_u32 v{t+3}, {KVB}, v{t+3}\nv_add_u32 v111, 256, v111")
        for b in range(1, 16):
            a(f"s_waitcnt vmcnt({15 - b})")
            for i in range(4): a(f"v_add_f32 v{i}, v{i}, v{4*b+i}")
        a(f"v_cvt_pk_bf16_f32 v0, v0, v1\nv_cvt_pk_bf16_f32 v1, v2, v3\nds_write_b64 v{t+3}, v[0:1]")
    a(f"v_bfe_u32 v{t}, v{LN}, 2, 1\nv_cmp_eq_u32 vcc, v{t}, v{H}\nv_bfe_u32 v{t+1}, v{LN}, 3, 2\nv_lshl_add_u32 v{t+1}, v{t+1}, 2, v{C}")
    a(f"v_mul_u32_u24 v{t+2}, 80, v{t+1}\nv_mul_u32_u24 v{t}, 1680, v{H}\ns_mov_b32 s3, {KVB}\nv_add3_u32 v{t+2}, v{t+2}, v{t}, s3\nv_mov_b32 v{t+3}, {ZR}\nv_cndmask_b32 v108, v{t+3}, v{t+2}, vcc")
    a(f"v_cmp_ge_u32 s[34:35], 4, v{t+1}\ns_and_b64 vcc, vcc, s[34:35]\nv_add_u32 v{t+2}, 1280, v{t+2}\nv_cndmask_b32 v109, v{t+3}, v{t+2}, vcc\ns_waitcnt lgkmcnt(0)\ns_barrier")
    for T in range(2):
        for s in range(5): a(f"ds_read_b128 {vr(32 + 4 * s, 4)}, v{108+T} offset:{16 * s}")
        for s in range(5): a(f"s_waitcnt lgkmcnt({4 - s})\n{MF} {vr(16 * T, 16)}, {vr(32 + 4 * s, 4)}, {vr(64 + 4 * s, 4)}, {vr(16 * T, 16) if s else 0}")
    a(f"v_mul_u32_u24 v{t}, 1280, v110\nv_mad_u32_u24 v{t}, v{H}, 40, v{t}\ns_mul_i32 s3, s32, {128 * 1280}\ns_mul_i32 s34, s33, 80\ns_add_u32 s3, s3, s34\ns_add_u32 s3, s3, {OBOFF}")
    a(f"v_add_f32 v20, {f2u(1e-6)}, v20\nv_rcp_f32 v20, v20")
    for i in range(10): a(f"v_mul_f32 v{2*i}, v20, v{2*i}\nv_mul_f32 v{2*i+1}, v20, v{2*i+1}\nv_cvt_pk_bf16_f32 v{32+i}, v{2*i}, v{2*i+1}")
    a(f"buffer_store_dwordx4 v[32:35], v{t}, s[16:19], s3 offen sc1\nbuffer_store_dwordx4 v[36:39], v{t}, s[16:19], s3 offen offset:16 sc1\nbuffer_store_dwordx2 v[40:41], v{t}, s[16:19], s3 offen offset:32 sc1")
    signal(a, 1, 1, "bo", t); stamp(a, 5)
    a(f"s_setprio 0\ns_mul_i32 s{SWROW}, s55, 80\ns_mul_i32 s{SXROW}, s54, {128 * 1280}\ns_add_u32 s{SXROW}, s{SXROW}, {OBOFF}")
    def wt(): waitfor(a, 1, "bo", T0 + 6); stamp(a, 6)
    gemm(a, 2, 2, 4, O_G, [o_c], 1280, 56, 16, wait=wt)
    a(f"s_lshl_b32 s43, s54, 2\ns_add_u32 s43, s43, s{SW}")
    outst(a, LN, 43, 1280, red=False)
KN = "concat_heads__mha_block__linear_kernel_hedgehog__prompt_kernel"
def k2():
    a = Asm(); head(a, 512, "k2")
    a("s_cmp_ge_u32 s2, 256\ns_cbranch_scc1 k2_b")
    attn(a); a("k2_b:"); brole(a); tsout(a, 0, 8, "b_ts")
    a("k2_end:\ns_endpgm")
    return kernel(KN, a.finish(), 128)
if __name__ == "__main__":
    out = sys.argv[1] if len(sys.argv) > 1 else "concat_heads__mha_block__linear_kernel_hedgehog__prompt.s"
    ref = open("concat_heads__mha_block__linear_kernel_hedgehog__prompt.s.ref").read().split("\n")
    hdr = [l for l in ref if l.startswith(";") and "@launch" not in l and "Override" not in l and "grid=ceil" not in l][:11]
    hdr += ["; @launch grid=(512,1,1) block=(512,1,1) lds=73744", '.amdgcn_target "amdgcn-amd-amdhsa--gfx950"']
    open(out, "w").write("\n".join(hdr) + "\n" + k2())
```
